```python
import torch

def _softmax(x, axis=-1):
    return torch.softmax(x, dim=axis)
def _gelu(x):
    return torch.nn.functional.gelu(x, approximate="tanh")
def _silu(x):
    return torch.nn.functional.silu(x)
def _sigmoid(x):
    return torch.sigmoid(x)
def _layernorm(x, axis=-1, eps=1e-5):
    m = x.mean(dim=axis, keepdim=True)
    v = x.var(dim=axis, keepdim=True, unbiased=False)
    return (x - m) / torch.sqrt(v + eps)
def _scatter_add(tgt, idx, src, axis=0):
    return tgt.clone().index_add_(axis, idx, src)
def _segment_sum(src, seg, n):
    out = torch.zeros((n,) + src.shape[1:], dtype=src.dtype)
    return out.index_add_(0, seg, src)
def _pad(x, pw):
    flat = tuple(v for pair in reversed(pw) for v in pair)
    return torch.nn.functional.pad(x, flat)

kernel_name = 'gated_mix__linear_kernel_hedgehog__mha_block__prompt'

def setup_inputs():

    _w = (lambda a: (lambda t: t.to(torch.bfloat16) if t.is_floating_point() else t)(torch.as_tensor(a)))
    def _A_setup():
        B, S, D, H = 1, 2048, 512, 32
        Dh = D // H
        return {
            "x": _w((lambda *s: torch.randn(*s, dtype=torch.bfloat16) * 0.05)(B, S, D)),
            "wqkv": _w((lambda *s: torch.randn(*s, dtype=torch.bfloat16) * 3.2)(D, 3 * D)),
            "w_phi": _w((lambda *s: torch.randn(*s, dtype=torch.bfloat16) * 3.2)(H, Dh, Dh) * (Dh ** -0.5)),
            "wo": _w((lambda *s: torch.randn(*s, dtype=torch.bfloat16) * 0.05)(D, D)),
        }
    _A_in = _A_setup()

    def _B_setup():
        B, S, D, H = 1, 2048, 512, 32
        return {
            "x": _w((lambda *s: torch.randn(*s, dtype=torch.bfloat16) * 0.05)(B, S, D)),
            "wqkv": _w((lambda *s: torch.randn(*s, dtype=torch.bfloat16) * 1.6)(D, 3 * D)),
            "wo": _w((lambda *s: torch.randn(*s, dtype=torch.bfloat16) * 0.05)(D, D)),
        }
    _B_in = _B_setup()

    return {
        "A_x": _A_in["x"],
        "A_wqkv": _A_in["wqkv"],
        "A_w_phi": _A_in["w_phi"],
        "A_wo": _A_in["wo"],
        "B_x": _B_in["x"],
        "B_wqkv": _B_in["wqkv"],
        "B_wo": _B_in["wo"],
        "gate_w": _w((lambda *s: torch.randn(*s, dtype=torch.bfloat16) * 0.05)(512) * 16.0),
    }

def reference(A_x, A_wqkv, A_w_phi, A_wo, B_x, B_wqkv, B_wo, gate_w):
    def _A_ref(x, wqkv, w_phi, wo):
        B, S, D = x.shape
        H = 32; Dh = D // H
        qkv = (lambda x, *d: x.permute(*d))((x @ wqkv).reshape(B, S, 3, H, Dh), 2, 0, 3, 1, 4)
        q, k, v = qkv[0], qkv[1], qkv[2]
        pq = torch.einsum("bhsd,hdf->bhsf", q, w_phi)
        pk = torch.einsum("bhsd,hdf->bhsf", k, w_phi)
        phi_q = torch.concatenate([_softmax(pq, axis=-1), _softmax(-pq, axis=-1)], axis=-1)
        phi_k = torch.concatenate([_softmax(pk, axis=-1), _softmax(-pk, axis=-1)], axis=-1)
        kv = torch.einsum("bhsf,bhsd->bhfd", phi_k, v)
        z  = torch.einsum("bhsf->bhf", phi_k)
        num = torch.einsum("bhqf,bhfd->bhqd", phi_q, kv)
        den = torch.einsum("bhqf,bhf->bhq", phi_q, z)[..., None] + 1e-6
        o = num / den
        return (lambda x, *d: x.permute(*d))(o, 0, 2, 1, 3).reshape(B, S, D) @ wo

    def _B_ref(x, wqkv, wo):
        B, S, D = x.shape
        H = 32
        Dh = D // H
        qkv = (lambda x, *d: x.permute(*d))((x @ wqkv).reshape(B, S, 3, H, Dh), 2, 0, 3, 1, 4)
        q, k, v = qkv[0], qkv[1], qkv[2]
        scores = torch.einsum("bhqd,bhkd->bhqk", q, k) * (Dh ** -0.5)
        p = _softmax(scores, axis=-1)
        o = torch.einsum("bhqk,bhkd->bhqd", p, v)
        return (lambda x, *d: x.permute(*d))(o, 0, 2, 1, 3).reshape(B, S, D) @ wo

    x = A_x
    g = _sigmoid((x * gate_w).sum(-1, keepdims=True))
    a = _A_ref(x, A_wqkv, A_w_phi, A_wo)
    b = _B_ref(x, B_wqkv, B_wo)
    return g * a + (1 - g) * b
```

```python
import re

TRANS = ("v_exp_f32", "v_log_f32", "v_rcp_f32", "v_rsq_f32", "v_sqrt_f32", "v_sin_f32", "v_cos_f32",
         "v_exp_f16", "v_rcp_iflag_f32")

def _regs(tok):
    tok = tok.strip()
    tok = re.sub(r"^-", "", tok)
    m = re.match(r"^(abs|neg)\((.*)\)$", tok)
    if m: tok = m.group(2)
    tok = tok.strip("|")
    m = re.match(r"^([vsa])(\d+)$", tok)
    if m: return {(m.group(1), int(m.group(2)))}
    m = re.match(r"^([vsa])\[(\d+):(\d+)\]$", tok)
    if m: return {(m.group(1), i) for i in range(int(m.group(2)), int(m.group(3)) + 1)}
    m = re.match(r"^([vsa])\[(\d+)\]$", tok)
    if m: return {(m.group(1), int(m.group(2)))}
    if tok in ("vcc", "exec", "m0", "scc"): return {(tok, 0)}
    if tok in ("vcc_lo", "vcc_hi"): return {("vcc", 0)}
    if tok in ("exec_lo", "exec_hi"): return {("exec", 0)}
    return set()

class Ins:
    __slots__ = ("text", "op", "ops", "kind", "wr", "rd", "passes", "cregs", "abregs", "states", "mods", "data")
    def __init__(self, text):
        self.text = text
        t = text.split(";")[0].strip()
        parts = t.split(None, 1)
        self.op = parts[0]
        rest = parts[1] if len(parts) > 1 else ""
        ops, cur, depth = [], "", 0
        for ch in rest:
            if ch in "[(": depth += 1
            if ch in "])": depth -= 1
            if ch == "," and depth == 0:
                ops.append(cur.strip()); cur = ""
            else:
                cur += ch
        if cur.strip(): ops.append(cur.strip())
        self.mods = ""
        if ops:
            lp = ops[-1].split(None, 1)
            ops[-1] = lp[0]
            self.mods = lp[1] if len(lp) > 1 else ""
        self.ops = ops
        op = self.op
        self.wr, self.rd = set(), set()
        self.passes = 0; self.cregs = set(); self.abregs = set(); self.states = 1; self.data = set()
        R = [_regs(o) for o in ops]
        if op.startswith("v_mfma") or op.startswith("v_smfmac"):
            self.kind = "mfma"
            self.passes = 8 if "32x32" in op else 4
            self.wr = R[0]
            if op.startswith("v_mfma"):
                self.abregs = R[1] | R[2]; self.cregs = R[3]
            else:
                self.abregs = R[1] | R[2] | R[3]; self.cregs = R[0]
            self.rd = self.abregs | self.cregs
        elif op.startswith("v_"):
            self.kind = "valu"
            if op.startswith("v_cmp"):
                self.wr = R[0]; self.rd = set().union(*R[1:])
            elif op.startswith("v_permlane") and "swap" in op:
                self.wr = R[0] | R[1]; self.rd = R[0] | R[1]
            elif op in ("v_add_co_u32", "v_sub_co_u32", "v_addc_co_u32", "v_subb_co_u32", "v_mad_u64_u32"):
                self.wr = R[0] | R[1]; self.rd = set().union(*R[2:])
            elif op == "v_nop":
                pass
            else:
                self.wr = R[0]; self.rd = set().union(*R[1:]) if len(R) > 1 else set()
                if op.startswith(("v_fmac", "v_pk_fmac", "v_dot2c", "v_writelane")) or "UNUSED_PRESERVE" in self.mods or "d16" in op:
                    self.rd |= R[0]
                if ("row_" in self.mods or "quad_perm" in self.mods or "_dpp" in op) :
                    self.rd |= R[0]
        elif op.startswith("ds_"):
            self.kind = "ds"
            if op.startswith(("ds_read", "ds_bpermute", "ds_permute", "ds_swizzle")) or "_rtn" in op:
                self.wr = R[0]; self.rd = set().union(*R[1:])
            else:
                self.rd = set().union(*R)
        elif op.startswith(("buffer_", "global_")):
            self.kind = "vmem"
            lds = " lds" in (" " + self.mods) or "_lds_" in op
            if op in ("buffer_inv", "buffer_wbl2"):
                pass
            elif "load" in op and not lds:
                self.wr = R[0]; self.rd = set().union(*R[1:])
                if "d16" in op: self.rd |= R[0]
            elif lds:
                self.rd = set().union(*R) | {("m0", 0)}
            else:
                self.rd = set().union(*R)
                if "atomic" in op and "sc0" in self.mods and op.startswith("buffer_"):
                    self.wr = R[0]
                if "atomic" in op and "sc0" in self.mods and op.startswith("global_"):
                    self.wr = R[0]
                if op.endswith(("x3", "x4")):
                    self.data = R[0] if op.startswith("buffer_") else R[1]
        elif op.startswith("s_"):
            self.kind = "salu"
            if op == "s_nop":
                self.states = int(ops[0], 0) + 1
            elif op.startswith(("s_cmp", "s_cbranch", "s_branch", "s_waitcnt", "s_barrier", "s_endpgm", "s_setprio", "s_sleep", "s_bitcmp", "s_setpc")):
                self.rd = set().union(*R) if R else set()
            else:
                self.wr = R[0] if R else set(); self.rd = set().union(*R[1:]) if len(R) > 1 else set()
                if "saveexec" in op: self.wr |= {("exec", 0)}
        else:
            raise ValueError("unknown op " + text)

def need(p, c):
    n = 0
    vg = lambda s: {r for r in s if r[0] in "va"}
    sg = lambda s: {r for r in s if r[0] in ("s", "vcc")}
    if p.kind == "valu":
        pw = vg(p.wr)
        if c.kind == "mfma" and pw & c.rd: n = max(n, 3 if p.op.startswith("v_dot") else 2)
        if p.op.startswith("v_dot") and c.kind in ("ds", "vmem") and pw & c.rd: n = max(n, 3)
        if c.kind == "valu":
            if p.op in TRANS and c.op not in TRANS and pw & (c.rd | c.wr): n = max(n, 1)
            if c.op.startswith(("v_readlane", "v_readfirstlane")) and pw & c.rd: n = max(n, 1)
            if c.op.startswith("v_permlane") and pw & c.rd: n = max(n, 2)
            if ("row_" in c.mods or "quad_perm" in c.mods or "_dpp" in c.op) and pw & c.rd: n = max(n, 2)
            if ("sdwa" in p.op or ("op_sel" in p.mods and not p.op.startswith("v_pk_"))) and pw & (c.rd | c.wr): n = max(n, 1)
            if p.op.startswith("v_dot") and pw & (c.rd | c.wr):
                if not (c.op == p.op and not (pw & (_regs(c.ops[1]) | _regs(c.ops[2])))): n = max(n, 3)
            ps = sg(p.wr)
            crd = set(c.rd)
            if c.op.startswith("v_cndmask") and len(c.ops) == 3: crd |= {("vcc", 0)}
            if ps & crd:
                n = max(n, 4 if c.op.startswith(("v_readlane", "v_writelane")) else 2)
            if ("vcc", 0) in ps and c.op.startswith("v_div_fmas"): n = max(n, 4)
        if c.kind == "vmem" and sg(p.wr) & c.rd: n = max(n, 5)
        if c.kind == "salu" and sg(p.wr) & c.rd: n = max(n, 1)
        if c.kind == "salu" and c.op.startswith("s_cbranch_vcc") and ("vcc", 0) in p.wr: n = max(n, 1)
        if p.op in TRANS and c.kind in ("ds", "vmem") and pw & c.rd: n = max(n, 1)
    if p.kind == "mfma":
        big = p.passes == 8
        if c.kind == "mfma":
            if p.wr & c.abregs: n = max(n, 12 if big else 8)
            if p.wr & c.cregs:
                if not (p.wr == c.cregs and p.passes == c.passes): n = max(n, 10 if big else 6)
            elif p.wr & c.wr:
                n = max(n, 10 if big else 6)
        elif c.kind in ("valu",):
            if p.wr & (c.rd | c.wr): n = max(n, 12 if big else 8)
            if p.cregs & c.wr: n = max(n, 7 if big else 3)
        elif c.kind in ("ds", "vmem"):
            if p.wr & (c.rd | c.wr): n = max(n, 12 if big else 8)
            if p.cregs & c.wr: n = max(n, 7 if big else 3)
    if p.kind == "salu":
        if ("m0", 0) in p.wr and c.kind == "vmem" and ("m0", 0) in c.rd: n = max(n, 1)
    if p.kind == "vmem" and p.data:
        if c.kind == "valu" and p.data & c.wr: n = max(n, 2)
        elif c.kind in ("mfma", "ds", "vmem") and p.data & c.wr: n = max(n, 1)
    return n

class Asm:
    def __init__(self):
        self.items = []
        self.nops_added = 0
    def raw(self, s):
        self.items.append(s)
    def label(self, name):
        self.items.append(name + ":")
    def __call__(self, text):
        for line in text.strip().split("\n"):
            line = line.strip()
            if not line or line.startswith(";"):
                if line: self.items.append("    " + line)
                continue
            if line.endswith(":") or line.startswith("."):
                self.items.append(line); continue
            self.items.append(Ins(line))
    def _window(self, out, idx_end, maxstates=14):
        res, d = [], 0
        i = idx_end - 1
        while i >= 0 and d < maxstates:
            it = out[i]
            if isinstance(it, Ins):
                if it.op in ("s_branch", "s_endpgm", "s_setpc_b64"): break
                res.append((it, d)); d += it.states
            i -= 1
        return res
    def finalize(self, verbose=False):
        out = []
        for it in self.items:
            if isinstance(it, Ins):
                req = 0
                for p, d in self._window(out, len(out)):
                    req = max(req, need(p, it) - d)
                while req > 0:
                    k = min(req, 16)
                    pos = len(out)
                    while pos > 0 and not isinstance(out[pos-1], Ins): pos -= 1
                    out.insert(pos, Ins(f"s_nop {k-1}")); self.nops_added += 1
                    if verbose: print("nop", k, "before", it.text)
                    req -= k
            out.append(it)
        changed = True
        while changed:
            changed = False
            labels = {it[:-1]: i for i, it in enumerate(out) if isinstance(it, str) and it.endswith(":")}
            for bi, it in enumerate(out):
                if isinstance(it, Ins) and it.op.startswith(("s_cbranch", "s_branch")) and it.ops and it.ops[0] in labels:
                    win = [(p, d + 1) for p, d in self._window(out, bi)]
                    j = labels[it.ops[0]]; d2 = 0; req = 0
                    while j < len(out) and d2 < 14:
                        c = out[j]
                        if isinstance(c, Ins):
                            for p, d in win:
                                req = max(req, need(p, c) - d - d2)
                            d2 += c.states
                            if c.op in ("s_branch", "s_endpgm", "s_setpc_b64"): break
                        j += 1
                    if req > 0:
                        out.insert(bi, Ins(f"s_nop {min(req,16)-1}")); self.nops_added += 1
                        if verbose: print("edge nop", req, "before", it.text)
                        changed = True
                        break
        self.items = out
    def text(self):
        return "\n".join(("    " + it.text) if isinstance(it, Ins) else it for it in self.items) + "\n"
```

```python
import sys, math, struct
from asmlib import Asm

NAME = "gated_mix__linear_kernel_hedgehog__mha_block__prompt"
def f32(x): return "0x%08x" % struct.unpack("<I", struct.pack("<f", x))[0]
LOG2E = 1.4426950408889634
WS_KV, WS_Q, WS_PQ, WS_KVP, WS_G, WS_O, WS_END = 0x0, 0x400000, 0x600000, 0xA00000, 0xC00000, 0xE00000, 0x1200000

def vr(a, n=1): return f"v{a}" if n == 1 else f"v[{a}:{a+n-1}]"
def sr(a, n=1): return f"s{a}" if n == 1 else f"s[{a}:{a+n-1}]"

def srd(a, d, base, nbytes):
    a(f"s_mov_b32 s{d}, s{base}")
    a(f"s_mov_b32 s{d+1}, s{base+1}")
    a(f"s_mov_b32 s{d+2}, {nbytes:#x}")
    a(f"s_mov_b32 s{d+3}, 0x20000")

def kernel_head(a, name):
    a.raw(f".globl {name}\n.p2align 8\n.type {name},@function")
    a.label(name)

def descriptor(name, vgpr, sgpr):
    return f""".amdhsa_kernel {name}
  .amdhsa_next_free_vgpr {vgpr}
  .amdhsa_next_free_sgpr {sgpr}
  .amdhsa_accum_offset {(vgpr+3)//4*4}
  .amdhsa_group_segment_fixed_size 0
  .amdhsa_kernarg_size 88
  .amdhsa_user_sgpr_count 2
  .amdhsa_user_sgpr_kernarg_segment_ptr 1
  .amdhsa_system_sgpr_workgroup_id_x 1
.end_amdhsa_kernel
"""

def interleave(*lists):
    out = []
    n = max(len(l) for l in lists)
    for i in range(n):
        for l in lists:
            if i < len(l): out.append(l[i])
    return out

def phi_softmax(P, T, O, sL, sNL):
    L = []
    L.append(f"v_max3_f32 v{T}, v{P}, v{P+1}, v{P+2}")
    L.append(f"v_max3_f32 v{T+1}, v{P+8}, v{P+9}, v{P+10}")
    L.append(f"v_max3_f32 v{T+2}, v{P+3}, v{P+4}, v{P+5}")
    L.append(f"v_max3_f32 v{T+3}, v{P+11}, v{P+12}, v{P+13}")
    L.append(f"v_max3_f32 v{T}, v{P+6}, v{P+7}, v{T}")
    L.append(f"v_max3_f32 v{T+1}, v{P+14}, v{P+15}, v{T+1}")
    L.append(f"v_max_f32 v{T}, v{T}, v{T+2}")
    L.append(f"v_max_f32 v{T+1}, v{T+1}, v{T+3}")
    L.append(f"v_permlane32_swap_b32 v{T}, v{T+1}")
    L.append(f"v_max_f32 v{T}, v{T}, v{T+1}")
    L.append(f"v_mul_f32 v{T}, s{sNL}, v{T}")
    L.append(f"v_mov_b32 v{T+1}, v{T}")
    L.append(f"v_permlane32_swap_b32 v{T}, v{T+1}")
    for i in range(4):
        L.append(f"v_pk_fma_f32 {vr(P+2*i,2)}, {vr(P+2*i,2)}, {sr(sL,2)}, {vr(T,2)} op_sel_hi:[1,0,0]")
    for i in range(4, 8):
        L.append(f"v_pk_fma_f32 {vr(P+2*i,2)}, {vr(P+2*i,2)}, {sr(sL,2)}, {vr(T,2)} op_sel:[0,0,1] op_sel_hi:[1,0,1]")
    for i in range(16):
        L.append(f"v_exp_f32 v{P+i}, v{P+i}")
    L.append(f"v_pk_add_f32 {vr(T,2)}, {vr(P,2)}, {vr(P+2,2)}")
    L.append(f"v_pk_add_f32 {vr(T+2,2)}, {vr(P+4,2)}, {vr(P+6,2)}")
    L.append(f"v_pk_add_f32 {vr(T+4,2)}, {vr(P+8,2)}, {vr(P+10,2)}")
    L.append(f"v_pk_add_f32 {vr(T+6,2)}, {vr(P+12,2)}, {vr(P+14,2)}")
    L.append(f"v_pk_add_f32 {vr(T,2)}, {vr(T,2)}, {vr(T+2,2)}")
    L.append(f"v_pk_add_f32 {vr(T+4,2)}, {vr(T+4,2)}, {vr(T+6,2)}")
    L.append(f"v_add_f32 v{T}, v{T}, v{T+1}")
    L.append(f"v_add_f32 v{T+1}, v{T+4}, v{T+5}")
    L.append(f"v_permlane32_swap_b32 v{T}, v{T+1}")
    L.append(f"v_add_f32 v{T}, v{T}, v{T+1}")
    L.append(f"v_rcp_f32 v{T}, v{T}")
    L.append(f"v_mov_b32 v{T+1}, v{T}")
    L.append(f"v_permlane32_swap_b32 v{T}, v{T+1}")
    for i in range(4):
        L.append(f"v_pk_mul_f32 {vr(P+2*i,2)}, {vr(P+2*i,2)}, {vr(T,2)} op_sel_hi:[1,0]")
    for i in range(4, 8):
        L.append(f"v_pk_mul_f32 {vr(P+2*i,2)}, {vr(P+2*i,2)}, {vr(T,2)} op_sel:[0,1] op_sel_hi:[1,1]")
    for i in range(8):
        L.append(f"v_cvt_pk_bf16_f32 v{O+i}, v{P+2*i}, v{P+2*i+1}")
    return L

def gen_k1(a):
    name = "hh_qkv_kernel"
    kernel_head(a, name)
    SLOT = 40960
    sX, sS0, sS1, sS2, sWS, sPH, sGT = 24, 28, 32, 36, 40, 44, 48
    sW, sG, sT, sTB, sROT = 52, 53, 54, 55, 56
    sXB, sC0, sC1, sC2 = 57, 58, 59, 60
    sM0X, sM0W = 61, 62
    sT0, sT1, sT2 = 63, 64, 65
    sL, sNL, sQS = 66, 68, 70
    sTT, sHP, sHEAD, sTILE = 72, 73, 74, 75
    vL = 1
    vXD0, vXD1, vWD = 2, 3, 4
    vXA = 6
    vWA = 14
    vT = 16
    vGX, vGW = 32, 36
    vGR = 40
    vPF = 44
    A0, A1, A2 = 64, 80, 96
    FB = 112
    a(f"""
    s_cmp_ge_u32 s2, 256
    s_cbranch_scc1 K1_END
    s_load_dwordx8 s[4:11], s[0:1], 0
    s_load_dwordx8 s[12:19], s[0:1], 32
    s_load_dwordx2 s[20:21], s[0:1], 80
    s_getpc_b64 s[22:23]
    v_and_b32 v{vL}, 63, v0
    v_lshrrev_b32 v{vT}, 6, v0
    s_and_b32 s{sG}, s2, 7
    v_readfirstlane_b32 s{sW}, v{vT}
    s_lshr_b32 s{sT0}, s2, 3
    s_and_b32 s{sT}, s{sT0}, 1
    s_lshr_b32 s{sTB}, s2, 4
    s_lshl_b32 s{sT0}, s{sT0}, 10
    v_lshlrev_b32 v{vT+1}, 1, v0
    v_add_u32 v{vT+1}, s{sT0}, v{vT+1}
    v_and_b32 v{vT+1}, 0xfffffffc, v{vT+1}
    v_min_u32 v{vT+1}, CODE_SPAN, v{vT+1}
    global_load_dword v{vPF}, v{vT+1}, s[22:23]
    ; rotation
    s_lshl_b32 s{sT0}, s{sT}, 2
    s_add_u32 s{sROT}, s{sTB}, s{sG}
    s_add_u32 s{sROT}, s{sROT}, s{sT0}
    v_lshrrev_b32 v{vT}, 3, v{vL}
    v_and_b32 v{vT+1}, 7, v{vL}
    v_lshrrev_b32 v{vT+2}, 4, v{vL}        ; l>>4
    v_xor_b32 v{vT+3}, v{vT+1}, v{vT+2}
    v_lshlrev_b32 v{vT+3}, 4, v{vT+3}
    v_lshl_add_u32 v{vXD0}, v{vT}, 10, v{vT+3}
    v_xor_b32 v{vXD1}, 64, v{vXD0}
    v_add_u32 v{vXD1}, {8192-1024}, v{vXD1}
    v_and_b32 v{vT+2}, 1, v{vT+2}
    v_lshlrev_b32 v{vT+2}, 2, v{vT+2}
    v_xor_b32 v{vT+3}, v{vT+1}, v{vT+2}
    v_lshlrev_b32 v{vT+3}, 4, v{vT+3}
    v_mul_u32_u24 v{vWD}, 3072, v{vT}
    v_add_u32 v{vWD}, v{vWD}, v{vT+3}
    s_lshl_b32 s{sXB}, s{sTB}, 17
    s_lshl_b32 s{sT0}, s{sW}, 14
    s_add_u32 s{sXB}, s{sXB}, s{sT0}
    s_lshl_b32 s{sT0}, s{sG}, 7
    s_mul_i32 s{sT1}, s{sW}, {8*3072}
    s_add_u32 s{sT0}, s{sT0}, s{sT1}        ; g*128 + w*8 rows
    s_lshl_b32 s{sT1}, s{sT}, 10            ; T*1024
    s_add_u32 s{sC1}, s{sT0}, s{sT1}
    s_sub_u32 s{sC0}, s{sT0}, s{sT1}
    s_add_u32 s{sC0}, s{sC0}, 1024
    s_add_u32 s{sC2}, s{sT0}, 2048
    s_lshl_b32 s{sM0X}, s{sW}, 11
    s_lshl_b32 s{sM0W}, s{sW}, 10
    s_add_u32 s{sM0W}, s{sM0W}, 16384
    v_lshlrev_b32 v{vT+4}, 4, v{vL}         ; lane*16
    s_lshl_b32 s{sT2}, s2, 3
    s_add_u32 s{sT2}, s{sT2}, s{sW}
    s_waitcnt lgkmcnt(0)
    """)
    srd(a, sX, 4, 2048*1024)
    srd(a, sS0, 6, 512*3072)
    srd(a, sS1, 14, 512*3072)
    a(f"s_cmp_eq_u32 s{sT}, 0")
    a(f"s_cselect_b32 s{sS2}, s6, s14")
    a(f"s_cselect_b32 s{sS2+1}, s7, s15")
    a(f"s_mov_b32 s{sS2+2}, {512*3072:#x}")
    a(f"s_mov_b32 s{sS2+3}, 0x20000")
    def dma_chunk(c):
        slot = (c % 4) * SLOT
        a(f"""
        s_add_u32 s{sT0}, s{sROT}, {c}
        s_and_b32 s{sT0}, s{sT0}, 7
        s_lshl_b32 s{sT1}, s{sT0}, 7
        s_add_u32 s{sT1}, s{sT1}, s{sXB}
        s_add_u32 m0, s{sM0X}, {slot}
        s_mul_i32 s{sT0}, s{sT0}, {64*3072}
        buffer_load_dwordx4 v{vXD0}, {sr(sX,4)}, s{sT1} offen lds
        buffer_load_dwordx4 v{vXD1}, {sr(sX,4)}, s{sT1} offen offset:1024 lds
        s_add_u32 m0, s{sM0W}, {slot}
        s_add_u32 s{sT1}, s{sT0}, s{sC0}
        buffer_load_dwordx4 v{vWD}, {sr(sS0,4)}, s{sT1} offen lds
        s_add_u32 m0, s{sM0W}, {slot+8192}
        s_add_u32 s{sT1}, s{sT0}, s{sC1}
        buffer_load_dwordx4 v{vWD}, {sr(sS1,4)}, s{sT1} offen lds
        s_add_u32 m0, s{sM0W}, {slot+16384}
        s_add_u32 s{sT1}, s{sT0}, s{sC2}
        buffer_load_dwordx4 v{vWD}, {sr(sS2,4)}, s{sT1} offen lds
        """)
    dma_chunk(0)
    srd(a, sGT, 18, 1024)
    a(f"""
    s_lshl_b32 s{sT0}, s{sT2}, 10
    buffer_load_dwordx4 {vr(vGX,4)}, v{vT+4}, {sr(sX,4)}, s{sT0} offen
    buffer_load_dwordx4 {vr(vGW,4)}, v{vT+4}, {sr(sGT,4)}, 0 offen
    """)
    for c in (1, 2, 3): dma_chunk(c)
    srd(a, sWS, 20, WS_END)
    srd(a, sPH, 8, 32*512)
    a(f"""
    s_and_b32 s{sTT}, s{sW}, 3
    s_lshr_b32 s{sHP}, s{sW}, 2
    v_and_b32 v{vT}, 31, v{vL}
    v_lshrrev_b32 v{vT+1}, 5, v{vL}         ; h
    v_bfe_u32 v{vT+2}, v{vL}, 1, 3          ; f
    v_xor_b32 v{vT+2}, v{vT+2}, v{vT+1}     ; h ^ f
    s_lshl_b32 s{sT0}, s{sTT}, 12
    v_lshlrev_b32 v{vT}, 7, v{vT}
    v_add_u32 v{vT}, s{sT0}, v{vT}
    """)
    for j in range(4):
        a(f"v_xor_b32 v{vT+3}, {2*j}, v{vT+2}")
        a(f"v_lshl_add_u32 v{vXA+j}, v{vT+3}, 4, v{vT}")
        a(f"v_add_u32 v{vXA+4+j}, {2*SLOT}, v{vXA+j}")
    a(f"""
    v_bfe_u32 v{vT}, v{vL}, 2, 2            ; r
    v_lshrrev_b32 v{vT+2}, 1, v{vT}         ; r>>1
    v_xor_b32 v{vT+2}, s{sHP}, v{vT+2}
    v_lshlrev_b32 v{vT+2}, 6, v{vT+2}       ; (p^(r>>1))*64
    v_lshl_add_u32 v{vT}, v{vT+1}, 3, v{vT} ; 8h + r
    v_lshl_add_u32 v{vT+2}, v{vT}, 7, v{vT+2}
    v_bfe_u32 v{vT}, v{vL}, 4, 1
    v_lshl_add_u32 v{vT+2}, v{vT}, 5, v{vT+2}
    v_and_b32 v{vT}, 3, v{vL}
    v_lshl_add_u32 v{vT+2}, v{vT}, 3, v{vT+2}
    v_add_u32 v{vWA}, 16384, v{vT+2}
    v_add_u32 v{vWA+1}, {16384+2*SLOT}, v{vT+2}
    s_mov_b32 s{sL}, {f32(LOG2E)}
    s_mov_b32 s{sL+1}, {f32(LOG2E)}
    s_mov_b32 s{sNL}, {f32(-LOG2E)}
    s_mov_b32 s{sQS}, {f32(0.25*LOG2E)}
    s_mov_b32 s{sQS+1}, {f32(0.25*LOG2E)}
    s_lshl_b32 s{sHEAD}, s{sG}, 2
    s_lshl_b32 s{sT0}, s{sHP}, 1
    s_add_u32 s{sHEAD}, s{sHEAD}, s{sT0}
    s_lshl_b32 s{sTILE}, s{sTB}, 2
    s_add_u32 s{sTILE}, s{sTILE}, s{sTT}
    """)
    a(f"""
    s_waitcnt vmcnt(15)
    v_dot2_f32_bf16 v{vGR}, v{vGX}, v{vGW}, 0
    v_dot2_f32_bf16 v{vGR}, v{vGX+1}, v{vGW+1}, v{vGR}
    v_dot2_f32_bf16 v{vGR}, v{vGX+2}, v{vGW+2}, v{vGR}
    v_dot2_f32_bf16 v{vGR}, v{vGX+3}, v{vGW+3}, v{vGR}
    """)
    def reads(c, j, buf):
        slot = c % 4
        hi = slot // 2
        so = (slot % 2) * SLOT
        b = FB + 16 * buf
        a(f"ds_read_b128 {vr(b,4)}, v{vXA+4*hi+j} offset:{so}")
        for s in range(3):
            for wh in range(2):
                a(f"ds_read_b64_tr_b16 {vr(b+4+4*s+2*wh,2)}, v{vWA+hi} offset:{so + s*8192 + j*2048 + wh*512}")
    def mfmas(first, buf):
        b = FB + 16 * buf
        c0 = "0" if first else vr(A0, 16)
        c1 = "0" if first else vr(A1, 16)
        c2 = "0" if first else vr(A2, 16)
        a(f"v_mfma_f32_32x32x16_bf16 {vr(A0,16)}, {vr(b+4,4)}, {vr(b,4)}, {c0}")
        a(f"v_mfma_f32_32x32x16_bf16 {vr(A1,16)}, {vr(b+8,4)}, {vr(b,4)}, {c1}")
        a(f"v_mfma_f32_32x32x16_bf16 {vr(A2,16)}, {vr(b,4)}, {vr(b+12,4)}, {c2}")
    waits = [None, 10, 10, 10, 10, 10, 6, 0]
    for c in range(8):
        if waits[c] is not None: a(f"s_waitcnt vmcnt({waits[c]})")
        a("s_barrier")
        reads(c, 0, 0)
        reads(c, 1, 1)
        if 1 <= c <= 4: dma_chunk(c + 3)
        if c == 0:
            a(f"""
            v_add_f32_dpp v{vGR}, v{vGR}, v{vGR} quad_perm:[1,0,3,2] row_mask:0xf bank_mask:0xf
            v_add_f32_dpp v{vGR}, v{vGR}, v{vGR} quad_perm:[2,3,0,1] row_mask:0xf bank_mask:0xf
            v_add_f32_dpp v{vGR}, v{vGR}, v{vGR} row_half_mirror row_mask:0xf bank_mask:0xf
            v_add_f32_dpp v{vGR}, v{vGR}, v{vGR} row_mirror row_mask:0xf bank_mask:0xf
            v_mov_b32 v{vGR+1}, v{vGR}
            v_permlane16_swap_b32 v{vGR}, v{vGR+1}
            v_add_f32 v{vGR}, v{vGR}, v{vGR+1}
            v_mov_b32 v{vGR+1}, v{vGR}
            v_permlane32_swap_b32 v{vGR}, v{vGR+1}
            v_add_f32 v{vGR}, v{vGR}, v{vGR+1}
            v_cvt_pk_bf16_f32 v{vGR}, v{vGR}, v{vGR}
            v_and_b32 v{vGR}, 0xffff0000, v{vGR}
            v_mul_f32 v{vGR}, s{sNL}, v{vGR}
            v_exp_f32 v{vGR}, v{vGR}
            v_add_f32 v{vGR}, 1.0, v{vGR}
            v_rcp_f32 v{vGR}, v{vGR}
            v_cvt_pk_bf16_f32 v{vGR}, v{vGR}, v{vGR}
            v_and_b32 v{vGR}, 0xffff0000, v{vGR}
            v_sub_f32 v{vGR+1}, 1.0, v{vGR}
            v_cvt_pk_bf16_f32 v{vGR+1}, v{vGR+1}, v{vGR+1}
            v_and_b32 v{vGR+1}, 0xffff0000, v{vGR+1}
            """)
        if c == 5:
            a(f"""
            s_lshl_b32 s{sT0}, s{sW}, 8
            s_mov_b32 m0, s{sT0}
            s_lshl_b32 s{sT1}, s{sG}, 11
            s_add_u32 s{sT1}, s{sT1}, s{sT0}
            v_lshlrev_b32 v{vT}, 2, v{vL}
            buffer_load_dword v{vT}, {sr(sPH,4)}, s{sT1} offen lds
            """)
        a("s_waitcnt lgkmcnt(7)")
        mfmas(c == 0, 0)
        reads(c, 2, 0)
        a("s_waitcnt lgkmcnt(7)")
        mfmas(False, 1)
        reads(c, 3, 1)
        a("s_waitcnt lgkmcnt(7)")
        mfmas(False, 0)
        if c == 7:
            a(f"""
            v_and_b32 v{vT}, 15, v{vL}
            v_lshlrev_b32 v{vT}, 3, v{vT}           ; (4r+c)*8 = r*32 + c*8
            v_lshrrev_b32 v{vT+1}, 5, v{vL}
            v_lshl_add_u32 v{vT}, v{vT+1}, 7, v{vT} ; + h*4 rows*32B
            s_lshl_b32 s{sT0}, s{sHP}, 10
            v_add_u32 v{vT}, s{sT0}, v{vT}
            ds_read_b64_tr_b16 {vr(48,2)}, v{vT} offset:0
            ds_read_b64_tr_b16 {vr(50,2)}, v{vT} offset:256
            ds_read_b64_tr_b16 {vr(52,2)}, v{vT} offset:512
            ds_read_b64_tr_b16 {vr(54,2)}, v{vT} offset:768
            s_waitcnt lgkmcnt(4)
            """)
        else:
            a("s_waitcnt lgkmcnt(0)")
        mfmas(False, 1)
    WP = 48
    F0 = 112
    F1 = 120
    F2 = 128
    P0, P1 = 144, 160
    T0r, T1r = 176, 184
    O0, O1 = 192, 200
    a(f"""
    s_waitcnt lgkmcnt(0)
    v_bfe_u32 v{vT}, v{vL}, 4, 1
    v_mul_u32_u24 v{vT+1}, 0x8000, v{vT}
    v_lshl_or_b32 v{vT+1}, v{vT+1}, 16, v{vT+1}
    """)
    for i in range(8): a(f"v_xor_b32 v{WP+i}, v{vT+1}, v{WP+i}")
    a(f"""
    s_lshl_b32 s{sT0}, s{sT2}, 3
    s_add_u32 s{sT0}, s{sT0}, {WS_G:#x}
    v_mov_b32 v{vT+2}, 0
    s_mov_b64 exec, 1
    buffer_store_dwordx2 {vr(vGR,2)}, v{vT+2}, {sr(sWS,4)}, s{sT0} offen
    s_mov_b64 exec, -1
    """)
    for i in range(8): a(f"v_cvt_pk_bf16_f32 v{F0+i}, v{A0+2*i}, v{A0+2*i+1}")
    a(f"v_mfma_f32_32x32x16_bf16 {vr(P0,16)}, {vr(WP,4)}, {vr(F0,4)}, 0")
    a(f"v_mfma_f32_32x32x16_bf16 {vr(P1,16)}, {vr(WP+4,4)}, {vr(F0+4,4)}, 0")
    for i in range(8): a(f"v_cvt_pk_bf16_f32 v{F2+i}, v{A2+2*i}, v{A2+2*i+1}")
    a(f"s_cmp_eq_u32 s{sT}, 0")
    a("s_cbranch_scc1 K1_T0")
    for i in range(8): a(f"v_cvt_pk_bf16_f32 v{F1+i}, v{A1+2*i}, v{A1+2*i+1}")
    a(f"""
    v_bfe_u32 v{vT}, v{vL}, 2, 1
    v_bfe_u32 v{vT+1}, v{vL}, 3, 1
    v_and_b32 v{vT+2}, 0x33, v{vL}
    v_lshl_or_b32 v{vT+2}, v{vT}, 3, v{vT+2}
    v_lshl_or_b32 v{vT+2}, v{vT+1}, 2, v{vT+2}
    v_lshlrev_b32 v{vT+2}, 4, v{vT+2}
    s_lshl_b32 s{sT0}, s{sHEAD}, 17
    s_lshl_b32 s{sT1}, s{sTILE}, 11
    s_add_u32 s{sT0}, s{sT0}, s{sT1}
    s_add_u32 s{sT1}, s{sT0}, 0x20000
    buffer_store_dwordx4 {vr(F1,4)}, v{vT+2}, {sr(sWS,4)}, s{sT0} offen
    buffer_store_dwordx4 {vr(F1+4,4)}, v{vT+2}, {sr(sWS,4)}, s{sT1} offen
    v_bfe_u32 v{vT}, v{vL}, 4, 1
    v_and_b32 v{vT+1}, 15, v{vL}
    v_lshrrev_b32 v{vT+3}, 5, v{vL}
    v_lshl_add_u32 v{vT+1}, v{vT+3}, 4, v{vT+1}
    v_lshlrev_b32 v{vT+1}, 4, v{vT+1}
    v_lshl_add_u32 v{vT+1}, v{vT}, 17, v{vT+1}
    buffer_store_dwordx4 {vr(F2,4)}, v{vT+1}, {sr(sWS,4)}, s{sT0} offen offset:1024
    buffer_store_dwordx4 {vr(F2+4,4)}, v{vT+1}, {sr(sWS,4)}, s{sT0} offen offset:1536
    """)
    for ins in interleave(phi_softmax(P0, T0r, O0, sL, sNL), phi_softmax(P1, T1r, O1, sL, sNL)): a(ins)
    a(f"""
    s_add_u32 s{sT0}, s{sT0}, {WS_PQ:#x}
    s_add_u32 s{sT1}, s{sT1}, {WS_PQ:#x}
    buffer_store_dwordx4 {vr(O0,4)}, v{vT+4}, {sr(sWS,4)}, s{sT0} offen
    buffer_store_dwordx4 {vr(O0+4,4)}, v{vT+4}, {sr(sWS,4)}, s{sT0} offen offset:1024
    buffer_store_dwordx4 {vr(O1,4)}, v{vT+4}, {sr(sWS,4)}, s{sT1} offen
    buffer_store_dwordx4 {vr(O1+4,4)}, v{vT+4}, {sr(sWS,4)}, s{sT1} offen offset:1024
    s_endpgm
    """)
    a.label("K1_T0")
    for i in range(8): a(f"v_pk_mul_f32 {vr(A1+2*i,2)}, {vr(A1+2*i,2)}, {sr(sQS,2)}")
    for i in range(8): a(f"v_cvt_pk_bf16_f32 v{F1+i}, v{A1+2*i}, v{A1+2*i+1}")
    a(f"""
    s_lshl_b32 s{sT0}, s{sHEAD}, 16
    s_lshl_b32 s{sT1}, s{sTILE}, 10
    s_add_u32 s{sT0}, s{sT0}, s{sT1}
    s_add_u32 s{sT0}, s{sT0}, {WS_Q:#x}
    s_add_u32 s{sT1}, s{sT0}, 0x10000
    buffer_store_dwordx4 {vr(F1,4)}, v{vT+4}, {sr(sWS,4)}, s{sT0} offen
    buffer_store_dwordx4 {vr(F1+4,4)}, v{vT+4}, {sr(sWS,4)}, s{sT1} offen
    """)
    ID0, ID1 = 56, 60
    VM0, VM1 = 208, 216
    a(f"""
    v_bfe_u32 v{vT}, v{vL}, 2, 1            ; b
    v_lshrrev_b32 v{vT+1}, 5, v{vL}         ; h
    v_bfe_u32 v{vT+2}, v{vL}, 3, 1          ; a
    v_bfe_u32 v{vT+3}, v{vL}, 1, 1          ; c>>1
    v_lshl_add_u32 v{vT+2}, v{vT+2}, 1, v{vT+3}
    v_and_b32 v{vT+3}, 1, v{vL}
    v_lshlrev_b32 v{vT+3}, 4, v{vT+3}
    v_mov_b32 v{vT+5}, 0x3f80
    v_lshlrev_b32 v{vT+3}, v{vT+3}, v{vT+5}
    v_cmp_eq_u32 vcc, v{vT}, v{vT+1}
    v_cndmask_b32 v{vT+3}, 0, v{vT+3}, vcc
    v_bfe_u32 v{vT}, v{vL}, 4, 1
    v_lshl_add_u32 v{vT+2}, v{vT}, 2, v{vT+2}
    """)
    for i in range(8):
        a(f"v_cmp_eq_u32 vcc, {i}, v{vT+2}")
        a(f"v_cndmask_b32 v{ID0+i}, 0, v{vT+3}, vcc")
    a(f"v_cmp_eq_u32 vcc, 0, v{vT}")
    a(f"v_mov_b32 v{vT+5}, 0x3f803f80")
    for i in range(8):
        a(f"v_cndmask_b32 v{VM0+i}, v{vT+5}, v{F2+i}, vcc")
        a(f"v_cndmask_b32 v{VM1+i}, v{F2+i}, v{vT+5}, vcc")
    for ins in interleave(phi_softmax(P0, T0r, O0, sL, sNL), phi_softmax(P1, T1r, O1, sL, sNL)): a(ins)
    a(f"""
    v_mfma_f32_32x32x16_bf16 {vr(P0,16)}, {vr(O0,4)}, {vr(ID0,4)}, 0
    v_mfma_f32_32x32x16_bf16 {vr(P1,16)}, {vr(O1,4)}, {vr(ID0,4)}, 0
    v_mfma_f32_32x32x16_bf16 {vr(P0,16)}, {vr(O0+4,4)}, {vr(ID1,4)}, {vr(P0,16)}
    v_mfma_f32_32x32x16_bf16 {vr(P1,16)}, {vr(O1+4,4)}, {vr(ID1,4)}, {vr(P1,16)}
    s_lshl_b32 s{sT0}, s{sHP}, 15
    s_lshl_b32 s{sT1}, s{sTT}, 12
    s_add_u32 s{sT0}, s{sT0}, s{sT1}
    s_add_u32 s{sT0}, s{sT0}, {SLOT}
    v_add_u32 v{vT}, s{sT0}, v{vT+4}
    v_xor_b32 v{vT+1}, 256, v{vT+4}
    v_add_u32 v{vT+1}, s{sT0}, v{vT+1}
    s_lshr_b32 s{sT0}, s{sW}, 1
    s_lshl_b32 s{sT1}, s{sT0}, 14
    s_and_b32 s{sT2}, s{sW}, 1
    s_lshl_b32 s{sT2}, s{sT2}, 11
    s_add_u32 s{sT1}, s{sT1}, s{sT2}
    s_add_u32 s{sT1}, s{sT1}, {SLOT}
    v_add_u32 v{vT+2}, s{sT1}, v{vT+4}
    s_lshl_b32 s{sT1}, s{sG}, 2
    s_add_u32 s{sT0}, s{sT0}, s{sT1}
    s_lshl_b32 s{sT0}, s{sT0}, 16
    s_lshl_b32 s{sT1}, s{sTB}, 12
    s_add_u32 s{sT0}, s{sT0}, s{sT1}
    s_add_u32 s{sT0}, s{sT0}, s{sT2}
    s_add_u32 s{sT0}, s{sT0}, {WS_KVP:#x}
    """)
    for i in range(8): a(f"v_cvt_pk_bf16_f32 v{O0+i}, v{P0+2*i}, v{P0+2*i+1}")
    for i in range(8): a(f"v_cvt_pk_bf16_f32 v{O1+i}, v{P1+2*i}, v{P1+2*i+1}")
    a(f"""
    v_mfma_f32_32x32x16_bf16 {vr(P0,16)}, {vr(O0,4)}, {vr(VM0,4)}, 0
    v_mfma_f32_32x32x16_bf16 {vr(P1,16)}, {vr(O1,4)}, {vr(VM1,4)}, 0
    v_mfma_f32_32x32x16_bf16 {vr(P0,16)}, {vr(O0+4,4)}, {vr(VM0+4,4)}, {vr(P0,16)}
    v_mfma_f32_32x32x16_bf16 {vr(P1,16)}, {vr(O1+4,4)}, {vr(VM1+4,4)}, {vr(P1,16)}
    """)
    for q in range(4): a(f"ds_write_b128 v{vT}, {vr(P0+4*q,4)} offset:{q*1024}")
    for q in range(4): a(f"ds_write_b128 v{vT+1}, {vr(P1+4*q,4)} offset:{16384+q*1024}")
    a("s_waitcnt lgkmcnt(0)")
    a("s_barrier")
    for u in range(2):
        for t in range(4):
            a(f"ds_read_b128 {vr(A0+16*u+4*t,4)}, v{vT+2} offset:{u*1024+t*4096}")
    for u in range(2):
        a(f"s_waitcnt lgkmcnt({4*(1-u)})")
        b = A0 + 16*u
        a(f"v_pk_add_f32 {vr(b,2)}, {vr(b,2)}, {vr(b+4,2)}")
        a(f"v_pk_add_f32 {vr(b+2,2)}, {vr(b+2,2)}, {vr(b+6,2)}")
        a(f"v_pk_add_f32 {vr(b+8,2)}, {vr(b+8,2)}, {vr(b+12,2)}")
        a(f"v_pk_add_f32 {vr(b+10,2)}, {vr(b+10,2)}, {vr(b+14,2)}")
        a(f"v_pk_add_f32 {vr(b,2)}, {vr(b,2)}, {vr(b+8,2)}")
        a(f"v_pk_add_f32 {vr(b+2,2)}, {vr(b+2,2)}, {vr(b+10,2)}")
        a(f"buffer_store_dwordx4 {vr(b,4)}, v{vT+4}, {sr(sWS,4)}, s{sT0} offen offset:{u*1024}")
    a.label("K1_END")
    a("s_endpgm")
    return name, 224, 80, 512, 163840

def gen_k2(a):
    name = "hh_attn_kernel"
    kernel_head(a, name)
    sWS = 8
    sW, sH, sQB, sT0, sT1, sT2, sTILE = 12, 13, 14, 15, 16, 17, 18
    sVM = 20
    sCNT, sPASS = 22, 23
    sWO = 24
    KVL = 131072
    vL, vL16, vKA, vVA, vIDX = 1, 2, 3, 4, 5
    vG = 6
    vQ = 8
    vT = 12
    NM = 16
    S = [32, 48]
    O = 64
    KF = [80, 84]
    VF = [88, 96]
    PQ = 104
    KP = 112
    a(f"""
    s_cmp_ge_u32 s2, 256
    s_cbranch_scc1 K2_END
    s_load_dwordx2 s[4:5], s[0:1], 80
    s_load_dwordx2 s[6:7], s[0:1], 24
    s_load_dwordx2 s[28:29], s[0:1], 48
    v_and_b32 v{vL}, 63, v0
    v_lshrrev_b32 v{vT}, 6, v0
    v_lshlrev_b32 v{vL16}, 4, v{vL}
    v_readfirstlane_b32 s{sW}, v{vT}
    s_and_b32 s{sH}, s2, 7
    s_lshl_b32 s{sH}, s{sH}, 2
    s_lshr_b32 s{sT0}, s2, 3
    s_and_b32 s{sT1}, s{sT0}, 3
    s_add_u32 s{sH}, s{sH}, s{sT1}          ; head
    s_lshr_b32 s{sQB}, s{sT0}, 2            ; q block 0..7
    s_lshl_b32 s{sTILE}, s{sQB}, 3
    s_add_u32 s{sTILE}, s{sTILE}, s{sW}     ; q tile
    s_lshl_b32 s{sT0}, s{sH}, 16
    s_lshl_b32 s{sT1}, s{sTILE}, 10
    s_add_u32 s{sT0}, s{sT0}, s{sT1}
    s_add_u32 s{sT2}, s{sT0}, {WS_Q:#x}
    s_lshl_b32 s{sT0}, s{sH}, 17
    s_lshl_b32 s{sT1}, s{sW}, 11
    s_add_u32 s{sT0}, s{sT0}, s{sT1}
    s_mov_b32 m0, s{sT1}
    s_waitcnt lgkmcnt(0)
    """)
    srd(a, sWS, 4, WS_END)
    a(f"buffer_load_dwordx4 {vr(vQ,4)}, v{vL16}, {sr(sWS,4)}, s{sT2} offen")
    for c in range(8):
        if c:
            a(f"s_add_u32 s{sT0}, s{sT0}, 16384")
            a(f"s_add_u32 m0, s{sT1}, {c*16384}")
        a(f"buffer_load_dwordx4 v{vL16}, {sr(sWS,4)}, s{sT0} offen lds")
        a(f"buffer_load_dwordx4 v{vL16}, {sr(sWS,4)}, s{sT0} offen offset:1024 lds")
    a(f"""
    s_lshl_b32 s{sT0}, s{sH}, 16
    s_lshr_b32 s{sT1}, s{sW}, 1
    s_lshl_b32 s{sT1}, s{sT1}, 10
    s_add_u32 s{sT0}, s{sT0}, s{sT1}
    s_and_b32 s{sT1}, s{sW}, 1
    s_lshl_b32 s{sT1}, s{sT1}, 3
    s_add_u32 s{sT0}, s{sT0}, s{sT1}
    s_add_u32 s{sT0}, s{sT0}, {WS_KVP:#x}
    """)
    for p in range(16):
        if p: a(f"s_add_u32 s{sT0}, s{sT0}, 4096")
        a(f"buffer_load_dwordx2 {vr(KP+2*p,2)}, v{vL16}, {sr(sWS,4)}, s{sT0} offen")
    a(f"""
    s_lshl_b32 s{sT0}, s{sH}, 17
    s_lshl_b32 s{sT1}, s{sTILE}, 11
    s_add_u32 s{sT0}, s{sT0}, s{sT1}
    s_add_u32 s{sT0}, s{sT0}, {WS_PQ:#x}
    buffer_load_dwordx4 {vr(PQ,4)}, v{vL16}, {sr(sWS,4)}, s{sT0} offen
    buffer_load_dwordx4 {vr(PQ+4,4)}, v{vL16}, {sr(sWS,4)}, s{sT0} offen offset:1024
    v_and_b32 v{vT}, 31, v{vL}
    v_lshlrev_b32 v{vT}, 3, v{vT}
    s_lshl_b32 s{sT0}, s{sTILE}, 8
    s_add_u32 s{sT0}, s{sT0}, {WS_G:#x}
    buffer_load_dwordx2 {vr(vG,2)}, v{vT}, {sr(sWS,4)}, s{sT0} offen
    """)
    NEXTRA = 19
    a(f"""
    v_mov_b32 v{vKA}, v{vL16}
    v_and_b32 v{vT}, 15, v{vL}
    v_lshrrev_b32 v{vT+1}, 5, v{vL}
    v_lshl_add_u32 v{vT}, v{vT+1}, 4, v{vT}
    v_lshlrev_b32 v{vVA}, 4, v{vT}
    v_mov_b32 v{vIDX}, 0xdddddddd
    s_mov_b32 s{sVM}, 0xffff
    s_mov_b32 s{sVM+1}, 0xffff
    s_mov_b32 s{sPASS}, 0
    """)
    for i in range(16): a(f"v_mov_b32 v{VF[0]+i}, 0x3f803f80")
    def rdK(t, buf):
        a(f"ds_read_b128 {vr(KF[buf],4)}, v{vKA} offset:{t*2048}")
    def rdV(t, buf):
        a(f"s_mov_b64 exec, {sr(sVM,2)}")
        a(f"ds_read_b128 {vr(VF[buf],4)}, v{vVA} offset:{t*2048+1024}")
        a(f"ds_read_b128 {vr(VF[buf]+4,4)}, v{vVA} offset:{t*2048+1536}")
        a("s_mov_b64 exec, -1")
    def qk(dst, buf, c=None):
        a(f"v_mfma_f32_32x32x16_bf16 {vr(dst,16)}, {vr(KF[buf],4)}, {vr(vQ,4)}, {c or vr(NM,16)}")
    def sm(src, buf, half):
        a(f"v_smfmac_f32_32x32x32_bf16 {vr(O,16)}, {vr(VF[buf]+4*half,4)}, {vr(src+8*half,8)}, v{vIDX}")
    def tile_max(src, acc_first):
        t = vT
        if acc_first:
            a(f"v_max3_f32 v{t}, v{src}, v{src+1}, v{src+2}")
            rest = list(range(3, 16))
        else:
            rest = list(range(0, 16))
        while len(rest) >= 2:
            a(f"v_max3_f32 v{t}, v{src+rest[0]}, v{src+rest[1]}, v{t}"); rest = rest[2:]
        if rest: a(f"v_max_f32 v{t}, v{src+rest[0]}, v{t}")
    def set_negm():
        a(f"""
        v_mov_b32 v{vT+1}, v{vT}
        v_permlane32_swap_b32 v{vT}, v{vT+1}
        v_max_f32 v{vT}, v{vT}, v{vT+1}
        """)
        for i in range(16): a(f"v_sub_f32 v{NM+i}, 0, v{vT}")
    a(f"s_waitcnt vmcnt({14+NEXTRA})")
    a("s_barrier")
    rdK(0, 0)
    a("s_waitcnt lgkmcnt(0)")
    qk(S[0], 0, "0")
    tile_max(S[0], True)
    set_negm()
    a.label("K2_PASS")
    rdK(0, 0)
    rdK(1, 1)
    rdV(0, 0)
    for i in range(16): a(f"v_mov_b32 v{O+i}, 0")
    for i in range(8): a(f"v_mov_b32 v{S[1]+8+i}, 0")
    a("s_waitcnt lgkmcnt(3)")
    qk(S[0], 0)
    a(f"s_mov_b32 s{sCNT}, 0")
    a("s_waitcnt lgkmcnt(0)")
    a.raw(".p2align 6")
    a.label("K2_LOOP")
    for t in range(8):
        cur, nxt = t & 1, (t & 1) ^ 1
        Sc = S[cur]
        if t == 6:
            a(f"s_cmp_lg_u32 s{sPASS}, 0")
            a("s_cbranch_scc1 K2_NOWAIT")
            a(f"s_cmp_ge_u32 s{sCNT}, 7")
            a("s_cbranch_scc1 K2_NOWAIT")
            for c in range(7):
                a(f"s_cmp_eq_u32 s{sCNT}, {c}")
                a(f"s_cbranch_scc0 K2_W{c}")
                a(f"s_waitcnt vmcnt({14-2*(c+1)+NEXTRA})")
                a.label(f"K2_W{c}")
            a("s_barrier")
            a.label("K2_NOWAIT")
        a(f"v_exp_f32 v{Sc}, v{Sc}")
        a(f"v_exp_f32 v{Sc+1}, v{Sc+1}")
        sm(S[nxt], nxt, 1)
        rdV(t + 1, nxt)
        a(f"v_exp_f32 v{Sc+2}, v{Sc+2}")
        a(f"v_exp_f32 v{Sc+3}, v{Sc+3}")
        a("s_waitcnt lgkmcnt(2)")
        qk(S[nxt], nxt)
        rdK(t + 2, cur)
        for i in range(4, 10): a(f"v_exp_f32 v{Sc+i}, v{Sc+i}")
        sm(Sc, cur, 0)
        for i in range(10, 16): a(f"v_exp_f32 v{Sc+i}, v{Sc+i}")
    a(f"""
    v_add_u32 v{vKA}, 16384, v{vKA}
    v_add_u32 v{vVA}, 16384, v{vVA}
    s_add_u32 s{sCNT}, s{sCNT}, 1
    s_cmp_lt_u32 s{sCNT}, 8
    s_cbranch_scc1 K2_LOOP
    """)
    sm(S[1], 1, 1)
    a(f"""
    v_mov_b32 v{vKA}, v{vL16}
    v_subrev_u32 v{vVA}, 0x20000, v{vVA}
    s_waitcnt lgkmcnt(0)
    s_cmp_lg_u32 s{sPASS}, 0
    s_cbranch_scc1 K2_FIN
    """)
    a("s_waitcnt vmcnt(0)")
    n = 16
    while n > 1:
        for i in range(n // 2):
            a(f"v_pk_add_f32 {vr(KP+2*i,2)}, {vr(KP+2*i,2)}, {vr(KP+2*(i+n//2),2)}")
        n //= 2
    a(f"""
    v_cvt_pk_bf16_f32 v{KP}, v{KP}, v{KP+1}
    s_lshr_b32 s{sT0}, s{sW}, 2
    s_lshl_b32 s{sT0}, s{sT0}, 10
    s_and_b32 s{sT1}, s{sW}, 3
    s_lshl_b32 s{sT1}, s{sT1}, 2
    s_add_u32 s{sT0}, s{sT0}, s{sT1}
    s_add_u32 s{sT0}, s{sT0}, {KVL+4096}
    v_add_u32 v{vT+2}, s{sT0}, v{vL16}
    ds_write_b32 v{vT+2}, v{KP}
    v_max3_f32 v{vT}, |v{O}|, |v{O+1}|, |v{O+2}|
    v_max3_f32 v{vT+1}, |v{O+3}|, |v{O+4}|, |v{O+5}|
    v_max3_f32 v{vT}, |v{O+6}|, |v{O+7}|, v{vT}
    v_add_f32 v{vT+3}, v{O}, v{O+1}
    v_add_f32 v{vT+3}, v{vT+3}, v{O+2}
    v_add_f32 v{vT+3}, v{vT+3}, v{O+3}
    v_add_f32 v{vT+3}, v{vT+3}, v{O+4}
    v_add_f32 v{vT+3}, v{vT+3}, v{O+5}
    v_add_f32 v{vT+3}, v{vT+3}, v{O+6}
    v_add_f32 v{vT+3}, v{vT+3}, v{O+7}
    v_max_f32 v{vT}, v{vT}, v{vT+1}
    v_mov_b32 v{vT+1}, {f32(2.0**120)}
    v_cmp_nle_f32 s[{sT0+1}:{sT0+2}], v{vT}, v{vT+1}
    v_cmp_u_f32 vcc, v{vT+3}, v{vT+3}
    s_or_b64 s[{sT0+1}:{sT0+2}], s[{sT0+1}:{sT0+2}], vcc
    v_mov_b32 v{vT+1}, {f32(2.0**40)}
    v_cmp_nle_f32 vcc, v{O+8}, v{vT+1}
    s_or_b64 vcc, s[{sT0+1}:{sT0+2}], vcc
    s_waitcnt lgkmcnt(0)
    s_barrier
    s_cbranch_vccz K2_FIN
    """)
    a(f"s_mov_b32 s{sPASS}, 1")
    a(f"s_mov_b32 s{sCNT}, 0")
    a(f"v_mov_b32 v{vT}, 0xff800000")
    a.label("K2_MAXLOOP")
    rdK(0, 0)
    a("s_waitcnt lgkmcnt(0)")
    qk(S[0], 0, "0")
    tile_max(S[0], False)
    a(f"""
    v_add_u32 v{vKA}, 2048, v{vKA}
    s_add_u32 s{sCNT}, s{sCNT}, 1
    s_cmp_lt_u32 s{sCNT}, 64
    s_cbranch_scc1 K2_MAXLOOP
    v_mov_b32 v{vKA}, v{vL16}
    """)
    set_negm()
    a("s_branch K2_PASS")
    a.label("K2_FIN")
    a(f"""
    v_add_u32 v{vT+2}, {KVL+4096}, v{vL16}
    ds_read_b128 {vr(KF[0],4)}, v{vT+2}
    ds_read_b128 {vr(KF[1],4)}, v{vT+2} offset:1024
    v_rcp_f32 v{vT}, v{O+8}
    v_mul_f32 v{vT}, v{vT}, v{vG+1}
    """)
    for i in range(4): a(f"v_pk_mul_f32 {vr(O+2*i,2)}, {vr(O+2*i,2)}, {vr(vT,2)} op_sel_hi:[1,0]")
    a("s_waitcnt lgkmcnt(0)")
    a(f"v_mfma_f32_32x32x16_bf16 {vr(S[0],16)}, {vr(KF[0],4)}, {vr(PQ,4)}, 0")
    a(f"v_mfma_f32_32x32x16_bf16 {vr(S[0],16)}, {vr(KF[1],4)}, {vr(PQ+4,4)}, {vr(S[0],16)}")
    for i in range(4): a(f"v_cvt_pk_bf16_f32 v{O+i}, v{O+2*i}, v{O+2*i+1}")
    a(f"""
    s_lshl_b32 s{sT0}, s{sTILE}, 16
    s_lshl_b32 s{sT1}, s{sH}, 10
    s_add_u32 s{sT0}, s{sT0}, s{sT1}
    s_add_u32 s{sT0}, s{sT0}, {WS_O:#x}
    s_add_u32 s{sT1}, s{sT0}, 0x8000
    buffer_store_dwordx4 {vr(O,4)}, v{vL16}, {sr(sWS,4)}, s{sT1} offen
    v_add_f32 v{vT}, {f32(1e-6)}, v{S[0]+8}
    v_rcp_f32 v{vT}, v{vT}
    v_mul_f32 v{vT}, v{vT}, v{vG}
    """)
    for i in range(4): a(f"v_pk_mul_f32 {vr(S[0]+2*i,2)}, {vr(S[0]+2*i,2)}, {vr(vT,2)} op_sel_hi:[1,0]")
    for i in range(4): a(f"v_cvt_pk_bf16_f32 v{S[0]+i}, v{S[0]+2*i}, v{S[0]+2*i+1}")
    a(f"buffer_store_dwordx4 {vr(S[0],4)}, v{vL16}, {sr(sWS,4)}, s{sT0} offen")
    a.label("K2_END")
    a("s_endpgm")
    return name, 144, 40, 512, KVL + 4096 + 2048

def gen_k3(a):
    name = "hh_out_kernel"
    kernel_head(a, name)
    sWS, sWO, sOUT = 12, 16, 20
    sW, sTB, sCB, sKQ, sTH, sT0, sT1, sT2, sM = 24, 25, 26, 27, 28, 29, 30, 31, 32
    vL, vL16, vWD, vWA, vT = 1, 2, 3, 4, 8
    OF = 16
    A0, A1 = 80, 96
    WF = 112
    a(f"""
    s_cmp_ge_u32 s2, 256
    s_cbranch_scc1 K3_END
    s_load_dwordx2 s[4:5], s[0:1], 80
    s_load_dwordx2 s[6:7], s[0:1], 24
    s_load_dwordx2 s[8:9], s[0:1], 48
    s_load_dwordx2 s[10:11], s[0:1], 64
    v_and_b32 v{vL}, 63, v0
    v_lshrrev_b32 v{vT}, 6, v0
    v_lshlrev_b32 v{vL16}, 4, v{vL}
    v_readfirstlane_b32 s{sW}, v{vT}
    s_and_b32 s{sTB}, s2, 7
    s_lshl_b32 s{sTB}, s{sTB}, 2
    s_lshr_b32 s{sT0}, s2, 3
    s_and_b32 s{sT1}, s{sT0}, 3
    s_add_u32 s{sTB}, s{sTB}, s{sT1}
    s_lshr_b32 s{sCB}, s{sT0}, 2
    s_and_b32 s{sKQ}, s{sW}, 3
    s_lshr_b32 s{sTH}, s{sW}, 2
    v_lshrrev_b32 v{vT}, 3, v{vL}
    v_and_b32 v{vT+1}, 7, v{vL}
    v_bfe_u32 v{vT+2}, v{vL}, 4, 1
    v_lshlrev_b32 v{vT+2}, 2, v{vT+2}
    v_xor_b32 v{vT+1}, v{vT+1}, v{vT+2}
    v_lshlrev_b32 v{vT+1}, 4, v{vT+1}
    v_lshl_add_u32 v{vWD}, v{vT}, 10, v{vT+1}
    s_lshl_b32 s{sT0}, s{sTB}, 1
    s_add_u32 s{sT0}, s{sT0}, s{sTH}
    s_lshl_b32 s{sT0}, s{sT0}, 16
    s_lshl_b32 s{sT1}, s{sKQ}, 14
    s_add_u32 s{sT0}, s{sT0}, s{sT1}
    s_add_u32 s{sT0}, s{sT0}, {WS_O:#x}
    s_and_b32 s{sT1}, s{sKQ}, 1
    s_lshl_b32 s{sT1}, s{sT1}, 18
    s_lshl_b32 s{sT2}, s{sTH}, 15
    s_add_u32 s{sT1}, s{sT1}, s{sT2}
    s_lshl_b32 s{sT2}, s{sCB}, 7
    s_add_u32 s{sT1}, s{sT1}, s{sT2}
    s_lshl_b32 s{sM}, s{sKQ}, 15
    s_lshl_b32 s{sT2}, s{sTH}, 12
    s_add_u32 s{sM}, s{sM}, s{sT2}
    s_cmp_lt_u32 s{sKQ}, 2
    s_waitcnt lgkmcnt(0)
    s_cselect_b32 s{sWO}, s6, s8
    s_cselect_b32 s{sWO+1}, s7, s9
    s_mov_b32 s{sWO+2}, {512*1024:#x}
    s_mov_b32 s{sWO+3}, 0x20000
    """)
    srd(a, sWS, 4, WS_END)
    for j in range(4):
        for i in range(4):
            a(f"s_add_u32 m0, s{sM}, {j*8192 + i*1024}")
            a(f"s_add_u32 s{sT2}, s{sT1}, {j*65536 + i*8192}")
            a(f"buffer_load_dwordx4 v{vWD}, {sr(sWO,4)}, s{sT2} offen lds")
        if j: a(f"s_add_u32 s{sT0}, s{sT0}, 4096")
        for i in range(4):
            a(f"buffer_load_dwordx4 {vr(OF+16*j+4*i,4)}, v{vL16}, {sr(sWS,4)}, s{sT0} offen offset:{i*1024}")
    srd(a, sOUT, 10, 2048*1024)
    a(f"""
    v_bfe_u32 v{vT}, v{vL}, 2, 2            ; r
    v_lshrrev_b32 v{vT+2}, 1, v{vT}
    v_lshlrev_b32 v{vT+2}, 6, v{vT+2}
    v_lshrrev_b32 v{vT+1}, 5, v{vL}
    v_lshl_add_u32 v{vT}, v{vT+1}, 2, v{vT}
    v_lshl_add_u32 v{vT+2}, v{vT}, 7, v{vT+2}
    v_bfe_u32 v{vT}, v{vL}, 4, 1
    v_lshl_add_u32 v{vT+2}, v{vT}, 5, v{vT+2}
    v_and_b32 v{vT}, 3, v{vL}
    v_lshl_add_u32 v{vT+2}, v{vT}, 3, v{vT+2}
    s_lshl_b32 s{sT2}, s{sKQ}, 15
    v_add_u32 v{vWA}, s{sT2}, v{vT+2}
    v_xor_b32 v{vWA+1}, 64, v{vWA}
    """)
    def reads(st, buf):
        b = WF + 8*buf
        for p in range(2):
            for wh in range(2):
                a(f"ds_read_b64_tr_b16 {vr(b+4*p+2*wh,2)}, v{vWA+p} offset:{st*2048 + wh*1024}")
    def mf(st, buf):
        b = WF + 8*buf
        c0 = "0" if st == 0 else vr(A0,16)
        c1 = "0" if st == 0 else vr(A1,16)
        a(f"v_mfma_f32_32x32x16_bf16 {vr(A0,16)}, {vr(b,4)}, {vr(OF+4*st,4)}, {c0}")
        a(f"v_mfma_f32_32x32x16_bf16 {vr(A1,16)}, {vr(b+4,4)}, {vr(OF+4*st,4)}, {c1}")
    for j in range(4):
        a(f"s_waitcnt vmcnt({24-8*j})")
        a("s_barrier")
        reads(4*j, 0); reads(4*j+1, 1)
        a("s_waitcnt lgkmcnt(4)")
        mf(4*j, 0)
        reads(4*j+2, 0)
        a("s_waitcnt lgkmcnt(4)")
        mf(4*j+1, 1)
        reads(4*j+3, 1)
        a("s_waitcnt lgkmcnt(4)")
        mf(4*j+2, 0)
        a("s_waitcnt lgkmcnt(0)")
        mf(4*j+3, 1)
    a(f"""
    v_and_b32 v{vT}, 31, v{vL}
    s_lshl_b32 s{sT0}, s{sTH}, 5
    s_lshl_b32 s{sT1}, s{sKQ}, 6
    s_add_u32 s{sT0}, s{sT0}, s{sT1}
    v_add_u32 v{vT}, s{sT0}, v{vT}
    v_mul_u32_u24 v{vT}, 272, v{vT}
    v_lshrrev_b32 v{vT+1}, 5, v{vL}
    v_lshl_add_u32 v{vT}, v{vT+1}, 4, v{vT}        ; + h*16B
    v_lshrrev_b32 v{vT+1}, 3, v0
    v_mul_u32_u24 v{vT+2}, 272, v{vT+1}
    v_and_b32 v{vT+3}, 7, v0
    v_lshl_add_u32 v{vT+2}, v{vT+3}, 5, v{vT+2}
    v_lshlrev_b32 v{vT+1}, 10, v{vT+1}
    v_lshl_add_u32 v{vT+1}, v{vT+3}, 4, v{vT+1}
    s_lshl_b32 s{sT0}, s{sTB}, 16
    s_lshl_b32 s{sT1}, s{sCB}, 7
    s_add_u32 s{sT0}, s{sT0}, s{sT1}
    s_barrier
    """)
    for p, A in enumerate((A0, A1)):
        for q in range(4):
            a(f"ds_write_b128 v{vT}, {vr(A+4*q,4)} offset:{p*128 + q*32}")
    a("s_waitcnt lgkmcnt(0)")
    a("s_barrier")
    for k in range(4):
        a(f"ds_read_b128 {vr(OF+8*k,4)}, v{vT+2} offset:{k*64*272}")
        a(f"ds_read_b128 {vr(OF+8*k+4,4)}, v{vT+2} offset:{k*64*272+16}")
    a("s_waitcnt lgkmcnt(4)")
    for i in range(4): a(f"v_pk_add_f32 {vr(OF+2*i,2)}, {vr(OF+2*i,2)}, {vr(OF+8+2*i,2)}")
    a("s_waitcnt lgkmcnt(0)")
    for i in range(4): a(f"v_pk_add_f32 {vr(OF+16+2*i,2)}, {vr(OF+16+2*i,2)}, {vr(OF+24+2*i,2)}")
    for i in range(4): a(f"v_pk_add_f32 {vr(OF+2*i,2)}, {vr(OF+2*i,2)}, {vr(OF+16+2*i,2)}")
    for i in range(4): a(f"v_cvt_pk_bf16_f32 v{OF+i}, v{OF+2*i}, v{OF+2*i+1}")
    a(f"buffer_store_dwordx4 {vr(OF,4)}, v{vT+1}, {sr(sOUT,4)}, s{sT0} offen")
    a.label("K3_END")
    a("s_endpgm")
    return name, 128, 40, 512, 131072

def build(path, verbose=False):
    ks = []
    body = ""
    for g in (gen_k1, gen_k2, gen_k3):
        a = Asm()
        k = g(a)
        a.finalize(verbose)
        ks.append(k)
        body += a.text()
    body = body.replace("    s_getpc_b64 s[22:23]\n", "    s_getpc_b64 s[22:23]\nK1_PC:\n")
    hdr = open(f"cdna_kernels/{NAME}.s.ref").read().split("; Override launch geometry")[0]
    for (n, v, s, blk, lds) in ks:
        hdr += f"; @launch kernel={n} grid=(256,1,1) block=({blk},1,1) lds={lds}\n"
    out = hdr + '.amdgcn_target "amdgcn-amd-amdhsa--gfx950"\n.text\n' + body
    out += "CODE_END:\n.set CODE_SPAN, CODE_END - K1_PC - 4\n"
    out += '.section .rodata,"a"\n'
    for (n, v, s, blk, lds) in ks:
        out += ".p2align 6\n" + descriptor(n, v, s)
    open(path, "w").write(out)

if __name__ == "__main__":
    build(sys.argv[1] if len(sys.argv) > 1 else f"cdna_kernels/{NAME}.s", verbose="-v" in sys.argv)
```

```python
import sys, struct
from asmlib import Asm

NAME = "gated_mix__linear_kernel_hedgehog__mha_block__prompt"
INSTR = "-i" in sys.argv
def f32(x): return "0x%08x" % struct.unpack("<I", struct.pack("<f", x))[0]
LOG2E = 1.4426950408889634
WS_KV, WS_Q, WS_PQ, WS_KVP, WS_O, WS_G, WS_CNT, WS_END = 0x0, 0x400000, 0x600000, 0xA00000, 0xE00000, 0x1200000, 0x1210000, 0x1220000
WS_DBG = 0x2000000
SPIN_MAX = 400000
def vr(a, n=1): return f"v{a}" if n == 1 else f"v[{a}:{a+n-1}]"
def sr(a, n=1): return f"s{a}" if n == 1 else f"s[{a}:{a+n-1}]"

class Cnt:
    def __init__(self, a, name, mx):
        self.a, self.name, self.mx, self.q = a, name, mx, []
    def issue(self, tag, n=1): self.q += [tag] * n
    def wait(self, *tags):
        idx = max((i for i, t in enumerate(self.q) if t in tags), default=-1)
        if idx < 0: return
        n = len(self.q) - 1 - idx
        self.a(f"s_waitcnt {self.name}({min(n, self.mx)})")
        self.q = self.q[idx + 1:] if n <= self.mx else self.q[len(self.q) - self.mx:]
    def all(self):
        self.a(f"s_waitcnt {self.name}(0)"); self.q = []
    def reset(self): self.q = []

sX, sWB, sWA, sWS, sPH, sGT, sDB, sWOA, sWOB, sOUT = 28, 32, 36, 40, 44, 48, 52, 56, 60, 64
sW, sG, sJ, sROT = 68, 69, 70, 71
sT0, sT1, sT2, sT3 = 72, 73, 74, 75
sXB, sWS0, sM0X, sM0W = 76, 77, 78, 79
sL, sNL, sQS, sVM = 80, 82, 84, 86
sHEAD, sQB, sTILE, sCNT = 88, 89, 90, 91
sPRIV, sWOS, sKVP, sA = 92, 93, 94, 95
vL, vL16 = 1, 2
vST = 15
vXD0, vXD1, vWD0, vWD1 = 3, 4, 5, 6
vXA, vWA = 7, 11
vT = 16
A0, A1, A2 = 32, 48, 64
FB = 80
vKA, vVA, vIDX, vPR, vWR = 3, 4, 5, 6, 7
vU = 9
NM, S0, S1, O0, O1 = 16, 32, 48, 64, 80
KF = [96, 100]; VF = [104, 112]; QF = [120, 124]
WO = 128
SLOT = 24576
XBASE = 98304
SPARE = 131072

def srd(a, d, base, nbytes):
    a(f"s_mov_b32 s{d}, s{base}")
    a(f"s_mov_b32 s{d+1}, s{base+1}")
    a(f"s_mov_b32 s{d+2}, {nbytes:#x}")
    a(f"s_mov_b32 s{d+3}, 0x20000")

def stamp(a, i):
    if not INSTR: return
    a("s_memtime s[96:97]")
    a("s_memrealtime s[98:99]")
    a("s_waitcnt lgkmcnt(0)")
    a(f"v_writelane_b32 v{vST}, s96, {2*i}")
    a(f"v_writelane_b32 v{vST}, s98, {2*i+1}")

def interleave(*lists):
    out = []
    n = max(len(l) for l in lists)
    for i in range(n):
        for l in lists:
            if i < len(l): out.append(l[i])
    return out

def phi_softmax(P, T, O):
    L = []
    L.append(f"v_max3_f32 v{T}, v{P}, v{P+1}, v{P+2}")
    L.append(f"v_max3_f32 v{T+1}, v{P+8}, v{P+9}, v{P+10}")
    L.append(f"v_max3_f32 v{T+2}, v{P+3}, v{P+4}, v{P+5}")
    L.append(f"v_max3_f32 v{T+3}, v{P+11}, v{P+12}, v{P+13}")
    L.append(f"v_max3_f32 v{T}, v{P+6}, v{P+7}, v{T}")
    L.append(f"v_max3_f32 v{T+1}, v{P+14}, v{P+15}, v{T+1}")
    L.append(f"v_max_f32 v{T}, v{T}, v{T+2}")
    L.append(f"v_max_f32 v{T+1}, v{T+1}, v{T+3}")
    L.append(f"v_permlane32_swap_b32 v{T}, v{T+1}")
    L.append(f"v_max_f32 v{T}, v{T}, v{T+1}")
    L.append(f"v_mul_f32 v{T}, s{sNL}, v{T}")
    L.append(f"v_mov_b32 v{T+1}, v{T}")
    L.append(f"v_permlane32_swap_b32 v{T}, v{T+1}")
    for i in range(4):
        L.append(f"v_pk_fma_f32 {vr(P+2*i,2)}, {vr(P+2*i,2)}, {sr(sL,2)}, {vr(T,2)} op_sel_hi:[1,0,0]")
    for i in range(4, 8):
        L.append(f"v_pk_fma_f32 {vr(P+2*i,2)}, {vr(P+2*i,2)}, {sr(sL,2)}, {vr(T,2)} op_sel:[0,0,1] op_sel_hi:[1,0,1]")
    for i in range(16):
        L.append(f"v_exp_f32 v{P+i}, v{P+i}")
    L.append(f"v_pk_add_f32 {vr(T,2)}, {vr(P,2)}, {vr(P+2,2)}")
    L.append(f"v_pk_add_f32 {vr(T+2,2)}, {vr(P+4,2)}, {vr(P+6,2)}")
    L.append(f"v_pk_add_f32 {vr(T+4,2)}, {vr(P+8,2)}, {vr(P+10,2)}")
    L.append(f"v_pk_add_f32 {vr(T+6,2)}, {vr(P+12,2)}, {vr(P+14,2)}")
    L.append(f"v_pk_add_f32 {vr(T,2)}, {vr(T,2)}, {vr(T+2,2)}")
    L.append(f"v_pk_add_f32 {vr(T+4,2)}, {vr(T+4,2)}, {vr(T+6,2)}")
    L.append(f"v_add_f32 v{T}, v{T}, v{T+1}")
    L.append(f"v_add_f32 v{T+1}, v{T+4}, v{T+5}")
    L.append(f"v_permlane32_swap_b32 v{T}, v{T+1}")
    L.append(f"v_add_f32 v{T}, v{T}, v{T+1}")
    L.append(f"v_rcp_f32 v{T}, v{T}")
    L.append(f"v_mov_b32 v{T+1}, v{T}")
    L.append(f"v_permlane32_swap_b32 v{T}, v{T+1}")
    for i in range(4):
        L.append(f"v_pk_mul_f32 {vr(P+2*i,2)}, {vr(P+2*i,2)}, {vr(T,2)} op_sel_hi:[1,0]")
    for i in range(4, 8):
        L.append(f"v_pk_mul_f32 {vr(P+2*i,2)}, {vr(P+2*i,2)}, {vr(T,2)} op_sel:[0,1] op_sel_hi:[1,1]")
    for i in range(8):
        L.append(f"v_cvt_pk_bf16_f32 v{O+i}, v{P+2*i}, v{P+2*i+1}")
    return L

_lab = [0]
def newlabel(p):
    _lab[0] += 1
    return f"L{p}{_lab[0]}"

def spin_check(a, vreg, srdreg, soff, target):
    lo, ld = newlabel("sp"), newlabel("sd")
    a(f"s_mov_b32 s{sCNT}, 0")
    a.label(lo)
    a(f"v_readfirstlane_b32 s{sT3}, v{vreg}")
    a(f"s_cmp_ge_u32 s{sT3}, {target}")
    a(f"s_cbranch_scc1 {ld}")
    a(f"buffer_load_dword v{vreg}, off, {sr(srdreg,4)}, {soff} sc1")
    a(f"s_add_u32 s{sCNT}, s{sCNT}, 1")
    a(f"s_cmp_lt_u32 s{sCNT}, {SPIN_MAX}")
    a("s_waitcnt vmcnt(0)")
    a(f"s_cbranch_scc1 {lo}")
    a.label(ld)

def arrive(a, cnt_sreg, base_idx, vtmp):
    lab = newlabel("ar")
    a(f"s_cmp_lg_u32 s{sW}, 0")
    a(f"s_cbranch_scc1 {lab}")
    a(f"s_lshl_b32 s{sT3}, s{cnt_sreg}, 8")
    a(f"s_add_u32 s{sT3}, s{sT3}, {WS_CNT + base_idx*256:#x}")
    a(f"v_mov_b32 v{vtmp}, 1")
    a("s_mov_b64 exec, 1")
    a(f"buffer_atomic_add v{vtmp}, off, {sr(sWS,4)}, s{sT3} sc1")
    a("s_mov_b64 exec, -1")
    a.label(lab)

def gen(a):
    kname = NAME + "_kernel"
    a.raw(f".globl {kname}\n.p2align 8\n.type {kname},@function")
    a.label(kname)
    vm = Cnt(a, "vmcnt", 63); lg = Cnt(a, "lgkmcnt", 15)
    a(f"""
    s_cmp_ge_u32 s2, 256
    s_cbranch_scc1 L_END
    s_load_dwordx8 s[4:11], s[0:1], 0
    s_load_dwordx8 s[12:19], s[0:1], 32
    s_load_dwordx4 s[20:23], s[0:1], 64
    s_load_dwordx2 s[24:25], s[0:1], 80
    s_getpc_b64 s[26:27]
    """)
    a.label("L_PC")
    a(f"""
    v_lshrrev_b32 v{vT}, 6, v0
    v_and_b32 v{vL}, 63, v0
    s_and_b32 s{sG}, s2, 7
    v_readfirstlane_b32 s{sW}, v{vT}
    s_lshr_b32 s{sJ}, s2, 3
    s_add_u32 s{sROT}, s{sJ}, s{sG}
    v_lshrrev_b32 v{vT}, 3, v{vL}
    v_and_b32 v{vT+1}, 7, v{vL}
    v_lshrrev_b32 v{vT+2}, 4, v{vL}
    v_xor_b32 v{vT+3}, v{vT+1}, v{vT+2}
    v_lshlrev_b32 v{vT+3}, 4, v{vT+3}
    v_lshl_add_u32 v{vXD0}, v{vT}, 10, v{vT+3}
    v_xor_b32 v{vXD1}, 64, v{vXD0}
    v_add_u32 v{vXD1}, {8192-1024}, v{vXD1}
    v_and_b32 v{vT+2}, 1, v{vT+2}
    v_lshlrev_b32 v{vT+2}, 2, v{vT+2}
    v_xor_b32 v{vT+3}, v{vT+1}, v{vT+2}
    v_lshlrev_b32 v{vT+3}, 4, v{vT+3}
    v_mul_u32_u24 v{vWD0}, 3072, v{vT}
    v_add_u32 v{vWD0}, v{vWD0}, v{vT+3}
    v_add_u32 v{vWD1}, {8*3072-1024}, v{vWD0}
    s_and_b32 s{sA}, s{sW}, 3
    s_lshl_b32 s{sXB}, s{sJ}, 16
    s_lshl_b32 s{sT0}, s{sA}, 14
    s_add_u32 s{sXB}, s{sXB}, s{sT0}
    s_lshl_b32 s{sWS0}, s{sG}, 7
    s_mul_i32 s{sT0}, s{sA}, {16*3072}
    s_add_u32 s{sWS0}, s{sWS0}, s{sT0}      ; g*128 + a*16 rows
    s_lshl_b32 s{sM0W}, s{sA}, 11
    s_add_u32 s{sM0X}, s{sM0W}, {XBASE}
    v_lshlrev_b32 v{vL16}, 4, v{vL}
    """)
    if INSTR:
        a(f"v_mov_b32 v{vST}, -1")
        stamp(a, 0)
    a(f"s_cmp_lt_u32 s{sW}, 4")
    a("s_waitcnt lgkmcnt(0)")
    srd(a, sX, 4, 2048*1024)
    srd(a, sWB, 14, 512*3072)
    a("s_cbranch_scc1 L_BROLE")

    def dma_x(n):
        a(f"""
        s_add_u32 s{sT0}, s{sROT}, {n}
        s_and_b32 s{sT0}, s{sT0}, 7
        s_lshl_b32 s{sT1}, s{sT0}, 7
        s_add_u32 m0, s{sM0X}, {(n&7)*8192}
        s_add_u32 s{sT1}, s{sT1}, s{sXB}
        buffer_load_dwordx4 v{vXD0}, {sr(sX,4)}, s{sT1} offen lds
        buffer_load_dwordx4 v{vXD1}, {sr(sX,4)}, s{sT1} offen offset:1024 lds
        """)
        vm.issue(("c", n), 2)
    def dma_w(n):
        R = sWB if n < 8 else sWA
        slot = (n % 4) * SLOT
        a(f"""
        s_add_u32 s{sT0}, s{sROT}, {n}
        s_and_b32 s{sT0}, s{sT0}, 7
        s_mul_i32 s{sT0}, s{sT0}, {64*3072}
        """)
        for s in range(3):
            a(f"s_add_u32 m0, s{sM0W}, {slot + s*8192}")
            a(f"s_add_u32 s{sT0}, s{sT0}, {'s%d' % sWS0 if s == 0 else 1024}")
            a(f"buffer_load_dwordx4 v{vWD0}, {sr(R,4)}, s{sT0} offen lds")
            a(f"buffer_load_dwordx4 v{vWD1}, {sr(R,4)}, s{sT0} offen offset:1024 lds")
        vm.issue(("c", n), 6)
    def common_setup():
        srd(a, sWA, 6, 512*3072)
        srd(a, sWS, 24, WS_END)
        srd(a, sWOA, 10, 512*1024)
        srd(a, sWOB, 16, 512*1024)
        srd(a, sOUT, 20, 2048*1024)
        a(f"""
        s_and_b32 s{sT0}, s{sW}, 1
        s_lshl_b32 s{sT0}, s{sT0}, 12
        s_add_u32 s{sT0}, s{sT0}, {XBASE}
        s_bfe_u32 s{sT1}, s{sW}, 0x10001
        v_and_b32 v{vT}, 31, v{vL}
        v_lshrrev_b32 v{vT+1}, 5, v{vL}
        v_bfe_u32 v{vT+2}, v{vL}, 1, 3
        v_xor_b32 v{vT+2}, v{vT+2}, v{vT+1}
        v_lshlrev_b32 v{vT}, 7, v{vT}
        v_add_u32 v{vT}, s{sT0}, v{vT}
        """)
        for j in range(4):
            a(f"v_xor_b32 v{vT+3}, {2*j}, v{vT+2}")
            a(f"v_lshl_add_u32 v{vXA+j}, v{vT+3}, 4, v{vT}")
        a(f"""
        v_bfe_u32 v{vT}, v{vL}, 2, 2
        v_lshrrev_b32 v{vT+2}, 1, v{vT}
        v_xor_b32 v{vT+2}, s{sT1}, v{vT+2}
        v_lshlrev_b32 v{vT+2}, 6, v{vT+2}
        v_lshl_add_u32 v{vT}, v{vT+1}, 3, v{vT}
        v_lshl_add_u32 v{vT+2}, v{vT}, 7, v{vT+2}
        v_bfe_u32 v{vT}, v{vL}, 4, 1
        v_lshl_add_u32 v{vT+2}, v{vT}, 5, v{vT+2}
        v_and_b32 v{vT}, 3, v{vL}
        v_lshl_add_u32 v{vWA}, v{vT}, 3, v{vT+2}
        v_add_u32 v{vWA+1}, {2*SLOT}, v{vWA}
        s_mov_b32 s{sL}, {f32(LOG2E)}
        s_mov_b32 s{sL+1}, {f32(LOG2E)}
        s_mov_b32 s{sNL}, {f32(-LOG2E)}
        s_mov_b32 s{sQS}, {f32(0.25*LOG2E)}
        s_mov_b32 s{sQS+1}, {f32(0.25*LOG2E)}
        s_mov_b32 s{sVM}, 0xffff
        s_mov_b32 s{sVM+1}, 0xffff
        ; P2 role
        s_lshl_b32 s{sHEAD}, s{sG}, 2
        s_and_b32 s{sT0}, s{sJ}, 3
        s_add_u32 s{sHEAD}, s{sHEAD}, s{sT0}
        s_lshr_b32 s{sQB}, s{sJ}, 2
        s_lshl_b32 s{sTILE}, s{sQB}, 3
        s_lshl_b32 s{sT0}, s{sA}, 1
        s_add_u32 s{sTILE}, s{sTILE}, s{sT0}
        s_lshr_b32 s{sT0}, s{sW}, 2
        s_add_u32 s{sTILE}, s{sTILE}, s{sT0}
        s_lshl_b32 s{sPRIV}, s{sW}, 12
        s_add_u32 s{sPRIV}, s{sPRIV}, {SPARE}
        """)
    def rd_x(n, j, buf):
        a(f"ds_read_b128 {vr(FB+16*buf,4)}, v{vXA+j} offset:{(n&7)*8192}"); lg.issue(("f", n, j))
    def rd_w(n, j, buf, s):
        slot = n % 4
        for wh in range(2):
            a(f"ds_read_b64_tr_b16 {vr(FB+16*buf+4+4*s+2*wh,2)}, v{vWA+slot//2} offset:{(slot%2)*SLOT + s*8192 + j*2048 + wh*512}")
        lg.issue(("f", n, j), 2)
    def step(first, buf, nxt):
        b = FB + 16 * buf
        for s, A in enumerate((A0, A1, A2)):
            c = "0" if first else vr(A, 16)
            if s < 2: a(f"v_mfma_f32_32x32x16_bf16 {vr(A,16)}, {vr(b+4+4*s,4)}, {vr(b,4)}, {c}")
            else:     a(f"v_mfma_f32_32x32x16_bf16 {vr(A,16)}, {vr(b,4)}, {vr(b+12,4)}, {c}")
            if nxt:
                if s == 2: rd_x(nxt[0], nxt[1], buf)
                rd_w(nxt[0], nxt[1], buf, s)
    def compute_pass(n0, pre, post):
        for n in range(n0, n0 + 8):
            pre(n); a("s_barrier"); post(n)
            if n == n0:
                for j in range(2):
                    rd_x(n, j, j)
                    for s in range(3): rd_w(n, j, j, s)
            else:
                step(False, 0, (n, 0)); step(False, 1, (n, 1))
            lg.wait(("f", n, 0)); step(n == n0, 0, (n, 2))
            lg.wait(("f", n, 1)); step(False, 1, (n, 3))
            if n == n0 + 7: post(("last", n))
            lg.all()
        pre(n0 + 8); a("s_barrier")
        step(False, 0, None); step(False, 1, None)

    for n in range(4):
        dma_x(n); dma_w(n)
        if n == 0:
            a(f"""
            s_lshl_b32 s{sT0}, s{sJ}, 10
            s_lshl_b32 s{sT1}, s{sA}, 8
            s_add_u32 s{sT0}, s{sT0}, s{sT1}
            v_lshlrev_b32 v{vT}, 2, v{vL}
            v_add_u32 v{vT}, s{sT0}, v{vT}
            v_min_u32 v{vT}, CODE_SPAN, v{vT}
            global_load_dword v{vT+8}, v{vT}, s[26:27]
            """)
            vm.issue("pf")
    for n in range(4, 8): dma_x(n)
    common_setup()
    srd(a, sGT, 18, 1024)
    GX, GW, GR = 112, 120, 124
    a(f"""
    s_lshl_b32 s{sT2}, s{sQB}, 8
    s_lshl_b32 s{sT0}, s{sHEAD}, 3
    s_add_u32 s{sT2}, s{sT2}, s{sT0}
    s_lshl_b32 s{sT0}, s{sA}, 1
    s_add_u32 s{sT2}, s{sT2}, s{sT0}
    s_lshl_b32 s{sT0}, s{sT2}, 10
    buffer_load_dwordx4 {vr(GX,4)}, v{vL16}, {sr(sX,4)}, s{sT0} offen
    buffer_load_dwordx4 {vr(GX+4,4)}, v{vL16}, {sr(sX,4)}, s{sT0} offen offset:1024
    buffer_load_dwordx4 {vr(GW,4)}, v{vL16}, {sr(sGT,4)}, 0 offen
    """)
    vm.issue("gate", 3)
    for n in range(8):
        vm.wait(("c", n))
        a("s_barrier")
        if n == 0: stamp(a, 1)
        if n >= 1: dma_w(n + 3)
        if n == 4:
            vm.wait("gate")
            for t in range(2):
                for i in range(4):
                    a(f"v_dot2_f32_bf16 v{GR+2*t}, v{GX+4*t+i}, v{GW+i}, {'0' if i == 0 else 'v%d' % (GR+2*t)}")
            for t in range(2):
                r = GR + 2*t
                a(f"""
                v_add_f32_dpp v{r}, v{r}, v{r} quad_perm:[1,0,3,2] row_mask:0xf bank_mask:0xf
                v_add_f32_dpp v{r}, v{r}, v{r} quad_perm:[2,3,0,1] row_mask:0xf bank_mask:0xf
                v_add_f32_dpp v{r}, v{r}, v{r} row_half_mirror row_mask:0xf bank_mask:0xf
                v_add_f32_dpp v{r}, v{r}, v{r} row_mirror row_mask:0xf bank_mask:0xf
                v_mov_b32 v{r+1}, v{r}
                v_permlane16_swap_b32 v{r}, v{r+1}
                v_add_f32 v{r}, v{r}, v{r+1}
                v_mov_b32 v{r+1}, v{r}
                v_permlane32_swap_b32 v{r}, v{r+1}
                v_add_f32 v{r}, v{r}, v{r+1}
                v_cvt_pk_bf16_f32 v{r}, v{r}, v{r}
                v_and_b32 v{r}, 0xffff0000, v{r}
                v_mul_f32 v{r}, s{sNL}, v{r}
                v_exp_f32 v{r}, v{r}
                v_add_f32 v{r}, 1.0, v{r}
                v_rcp_f32 v{r}, v{r}
                v_cvt_pk_bf16_f32 v{r}, v{r}, v{r}
                v_and_b32 v{r}, 0xffff0000, v{r}
                v_sub_f32 v{r+1}, 1.0, v{r}
                v_cvt_pk_bf16_f32 v{r+1}, v{r+1}, v{r+1}
                v_and_b32 v{r+1}, 0xffff0000, v{r+1}
                """)
            a(f"""
            s_lshl_b32 s{sT0}, s{sT2}, 3
            s_add_u32 s{sT0}, s{sT0}, {WS_G:#x}
            s_mov_b64 exec, 1
            buffer_store_dwordx4 {vr(GR,4)}, off, {sr(sWS,4)}, s{sT0} sc1
            s_mov_b64 exec, -1
            """)
            vm.issue("gst")
    WP, ID0, ID1 = 112, 120, 124
    a(f"""
    v_bfe_u32 v{vT}, v{vL}, 2, 1
    v_lshrrev_b32 v{vT+1}, 5, v{vL}
    v_bfe_u32 v{vT+2}, v{vL}, 3, 1
    v_bfe_u32 v{vT+3}, v{vL}, 1, 1
    v_lshl_add_u32 v{vT+2}, v{vT+2}, 1, v{vT+3}
    v_and_b32 v{vT+3}, 1, v{vL}
    v_lshlrev_b32 v{vT+3}, 4, v{vT+3}
    v_mov_b32 v{vT+5}, 0x3f80
    v_lshlrev_b32 v{vT+3}, v{vT+3}, v{vT+5}
    v_cmp_eq_u32 vcc, v{vT}, v{vT+1}
    v_cndmask_b32 v{vT+3}, 0, v{vT+3}, vcc
    v_bfe_u32 v{vT}, v{vL}, 4, 1
    v_lshl_add_u32 v{vT+2}, v{vT}, 2, v{vT+2}
    """)
    vm.wait("gst")
    for i in range(8):
        a(f"v_cmp_eq_u32 vcc, {i}, v{vT+2}")
        a(f"v_cndmask_b32 v{ID0+i}, 0, v{vT+3}, vcc")
    a(f"""
    v_mul_u32_u24 v{vT+1}, 0x8000, v{vT}
    v_lshl_or_b32 v{vT+6}, v{vT+1}, 16, v{vT+1}
    v_and_b32 v{vT}, 15, v{vL}
    v_lshlrev_b32 v{vT}, 3, v{vT}
    v_lshrrev_b32 v{vT+1}, 5, v{vL}
    v_lshl_add_u32 v{vT}, v{vT+1}, 7, v{vT}
    s_bfe_u32 s{sT1}, s{sW}, 0x10001
    s_lshl_b32 s{sT0}, s{sT1}, 10
    v_add_u32 v{vT+7}, s{sT0}, v{vT}
    """)
    def preA(n):
        if n <= 10: vm.wait(("c", n))
    def postA(n):
        if n == 8: stamp(a, 2)
        if n == ("last", 15):
            for i in range(4):
                a(f"ds_read_b64_tr_b16 {vr(WP+2*i,2)}, v{vT+7} offset:{256*i}")
    compute_pass(8, preA, postA)
    stamp(a, 3)
    FQ, FK, FV = 128, 136, 144
    P = [160, 176, 192, 208]; TT = [224, 232, 240, 248]
    OQ, OK_ = 80, 96
    VM0, VM1 = 32, 40
    for i in range(8): a(f"v_xor_b32 v{WP+i}, v{vT+6}, v{WP+i}")
    for i in range(8): a(f"v_cvt_pk_bf16_f32 v{FK+i}, v{A1+2*i}, v{A1+2*i+1}")
    for i in range(8): a(f"v_cvt_pk_bf16_f32 v{FQ+i}, v{A0+2*i}, v{A0+2*i+1}")
    a(f"v_mfma_f32_32x32x16_bf16 {vr(P[0],16)}, {vr(WP,4)}, {vr(FK,4)}, 0")
    a(f"v_mfma_f32_32x32x16_bf16 {vr(P[1],16)}, {vr(WP+4,4)}, {vr(FK+4,4)}, 0")
    a(f"v_mfma_f32_32x32x16_bf16 {vr(P[2],16)}, {vr(WP,4)}, {vr(FQ,4)}, 0")
    a(f"v_mfma_f32_32x32x16_bf16 {vr(P[3],16)}, {vr(WP+4,4)}, {vr(FQ+4,4)}, 0")
    for i in range(8): a(f"v_cvt_pk_bf16_f32 v{FV+i}, v{A2+2*i}, v{A2+2*i+1}")
    a(f"v_cmp_eq_u32 vcc, 0, v{vT+6}")
    a(f"v_mov_b32 v{vT+5}, 0x3f803f80")
    for i in range(8):
        a(f"v_cndmask_b32 v{VM0+i}, v{vT+5}, v{FV+i}, vcc")
        a(f"v_cndmask_b32 v{VM1+i}, v{FV+i}, v{vT+5}, vcc")
    for ins in interleave(phi_softmax(P[0], TT[0], OK_), phi_softmax(P[1], TT[1], OK_ + 8)): a(ins)
    a(f"""
    v_mfma_f32_32x32x16_bf16 {vr(P[0],16)}, {vr(OK_,4)}, {vr(ID0,4)}, 0
    v_mfma_f32_32x32x16_bf16 {vr(P[1],16)}, {vr(OK_+8,4)}, {vr(ID0,4)}, 0
    v_mfma_f32_32x32x16_bf16 {vr(P[0],16)}, {vr(OK_+4,4)}, {vr(ID1,4)}, {vr(P[0],16)}
    v_mfma_f32_32x32x16_bf16 {vr(P[1],16)}, {vr(OK_+12,4)}, {vr(ID1,4)}, {vr(P[1],16)}
    """)
    qs = interleave(phi_softmax(P[2], TT[2], OQ), phi_softmax(P[3], TT[3], OQ + 8))
    for ins in qs[:42]: a(ins)
    for i in range(8): a(f"v_cvt_pk_bf16_f32 v{OK_+i}, v{P[0]+2*i}, v{P[0]+2*i+1}")
    for i in range(8): a(f"v_cvt_pk_bf16_f32 v{OK_+8+i}, v{P[1]+2*i}, v{P[1]+2*i+1}")
    a(f"""
    v_mfma_f32_32x32x16_bf16 {vr(P[0],16)}, {vr(OK_,4)}, {vr(VM0,4)}, 0
    v_mfma_f32_32x32x16_bf16 {vr(P[1],16)}, {vr(OK_+8,4)}, {vr(VM1,4)}, 0
    v_mfma_f32_32x32x16_bf16 {vr(P[0],16)}, {vr(OK_+4,4)}, {vr(VM0+4,4)}, {vr(P[0],16)}
    v_mfma_f32_32x32x16_bf16 {vr(P[1],16)}, {vr(OK_+12,4)}, {vr(VM1+4,4)}, {vr(P[1],16)}
    """)
    for ins in qs[42:74]: a(ins)
    a(f"""
    s_lshl_b32 s{sT0}, s{sA}, 12
    s_add_u32 s{sT0}, s{sT0}, {SPARE+8192}
    v_add_u32 v{vT}, s{sT0}, v{vL16}
    s_xor_b32 s{sT0}, s{sT0}, 4096
    v_add_u32 v{vT+1}, s{sT0}, v{vL16}
    s_bitcmp1_b32 s{sW}, 0
    s_cbranch_scc1 L_A_TT1
    """)
    for q in range(4): a(f"ds_write_b128 v{vT}, {vr(P[1]+4*q,4)} offset:{q*1024}")
    a("s_branch L_A_TTJ")
    a.label("L_A_TT1")
    for q in range(4): a(f"ds_write_b128 v{vT}, {vr(P[0]+4*q,4)} offset:{q*1024}")
    a("s_nop 1")
    for i in range(16): a(f"v_mov_b32 v{P[0]+i}, v{P[1]+i}")
    a.label("L_A_TTJ")
    for ins in qs[74:]: a(ins)
    a(f"""
    s_lshl_b32 s{sT0}, s{sG}, 2
    s_and_b32 s{sT1}, s{sW}, 2
    s_add_u32 s{sT2}, s{sT0}, s{sT1}
    s_lshl_b32 s{sT0}, s{sT2}, 17
    s_lshl_b32 s{sT1}, s{sJ}, 1
    s_and_b32 s{sT3}, s{sW}, 1
    s_add_u32 s{sT1}, s{sT1}, s{sT3}
    s_lshl_b32 s{sT1}, s{sT1}, 11
    s_add_u32 s{sT0}, s{sT0}, s{sT1}
    s_add_u32 s{sT0}, s{sT0}, {WS_PQ:#x}
    s_add_u32 s{sT1}, s{sT0}, 0x20000
    buffer_store_dwordx4 {vr(OQ,4)}, v{vL16}, {sr(sWS,4)}, s{sT0} offen sc1
    buffer_store_dwordx4 {vr(OQ+4,4)}, v{vL16}, {sr(sWS,4)}, s{sT0} offen offset:1024 sc1
    buffer_store_dwordx4 {vr(OQ+8,4)}, v{vL16}, {sr(sWS,4)}, s{sT1} offen sc1
    buffer_store_dwordx4 {vr(OQ+12,4)}, v{vL16}, {sr(sWS,4)}, s{sT1} offen offset:1024 sc1
    s_add_u32 s{sT2}, s{sT2}, s{sT3}
    s_lshl_b32 s{sT0}, s{sT2}, 17
    s_lshl_b32 s{sT1}, s{sJ}, 12
    s_add_u32 s{sT0}, s{sT0}, s{sT1}
    s_add_u32 s{sT0}, s{sT0}, {WS_KVP:#x}
    s_lshl_b32 s{sT3}, s{sT3}, 8
    v_xor_b32 v{vT+2}, s{sT3}, v{vL16}
    s_waitcnt lgkmcnt(0)
    """)
    stamp(a, 4)
    a("s_barrier")
    for q in range(4): a(f"ds_read_b128 {vr(P[1]+4*q,4)}, v{vT+1} offset:{q*1024}")
    for q in range(4):
        a(f"s_waitcnt lgkmcnt({3-q})")
        a(f"v_pk_add_f32 {vr(P[0]+4*q,2)}, {vr(P[0]+4*q,2)}, {vr(P[1]+4*q,2)}")
        a(f"v_pk_add_f32 {vr(P[0]+4*q+2,2)}, {vr(P[0]+4*q+2,2)}, {vr(P[1]+4*q+2,2)}")
        a(f"buffer_store_dwordx4 {vr(P[0]+4*q,4)}, v{vT+2}, {sr(sWS,4)}, s{sT0} offen offset:{q*1024} sc1")
    a("s_branch L_P2")

    a.label("L_BROLE")
    vm.reset(); lg.reset()
    common_setup()
    srd(a, sDB, 22, 256)
    srd(a, sPH, 8, 32*512)
    a(f"""
    s_or_b32 s{sT0}, s2, s{sW}
    s_cmp_lg_u32 s{sT0}, 0
    s_cbranch_scc1 L_NOZERO
    v_lshlrev_b32 v{vT}, 8, v{vL}
    v_mov_b32 v{vT+1}, 0
    s_mov_b32 s{sT0}, {WS_CNT:#x}
    buffer_store_dword v{vT+1}, v{vT}, {sr(sWS,4)}, s{sT0} offen sc1
    s_waitcnt vmcnt(0)
    v_mov_b32 v{vT+1}, 1
    s_mov_b64 exec, 1
    buffer_store_dword v{vT+1}, off, {sr(sDB,4)}, 0 sc1
    s_mov_b64 exec, -1
    """)
    a.label("L_NOZERO")
    vKS, vVS = vT + 8, vT + 9
    a(f"""
    v_bfe_u32 v{vT}, v{vL}, 2, 1
    v_bfe_u32 v{vT+1}, v{vL}, 3, 1
    v_and_b32 v{vT+2}, 0x33, v{vL}
    v_lshl_or_b32 v{vT+2}, v{vT}, 3, v{vT+2}
    v_lshl_or_b32 v{vT+2}, v{vT+1}, 2, v{vT+2}
    v_lshlrev_b32 v{vKS}, 4, v{vT+2}
    v_bfe_u32 v{vT}, v{vL}, 4, 1
    v_and_b32 v{vT+1}, 15, v{vL}
    v_lshrrev_b32 v{vT+3}, 5, v{vL}
    v_lshl_add_u32 v{vT+1}, v{vT+3}, 4, v{vT+1}
    v_lshlrev_b32 v{vT+1}, 4, v{vT+1}
    v_lshl_add_u32 v{vVS}, v{vT}, 17, v{vT+1}
    """)
    def postB(n):
        if n == 0: stamp(a, 1)
    compute_pass(0, lambda n: None, postB)
    stamp(a, 2)
    dma_w(11)
    vGD = vT + 10
    a(f"buffer_load_dword v{vGD}, off, {sr(sDB,4)}, 0 sc1"); vm.issue("guard")
    F0 = 128
    a(f"""
    s_lshl_b32 s{sT0}, s{sG}, 2
    s_and_b32 s{sT1}, s{sW}, 2
    s_add_u32 s{sT2}, s{sT0}, s{sT1}
    s_lshl_b32 s{sT1}, s{sJ}, 1
    s_and_b32 s{sT3}, s{sW}, 1
    s_add_u32 s{sT3}, s{sT1}, s{sT3}
    s_lshl_b32 s{sT0}, s{sT2}, 17
    s_lshl_b32 s{sT1}, s{sT3}, 11
    s_add_u32 s{sT0}, s{sT0}, s{sT1}
    s_add_u32 s{sT1}, s{sT0}, 0x20000
    """)
    for i in range(8): a(f"v_cvt_pk_bf16_f32 v{F0+i}, v{A1+2*i}, v{A1+2*i+1}")
    a(f"buffer_store_dwordx4 {vr(F0,4)}, v{vKS}, {sr(sWS,4)}, s{sT0} offen sc1")
    a(f"buffer_store_dwordx4 {vr(F0+4,4)}, v{vKS}, {sr(sWS,4)}, s{sT1} offen sc1")
    for i in range(8): a(f"v_cvt_pk_bf16_f32 v{F0+8+i}, v{A2+2*i}, v{A2+2*i+1}")
    a(f"buffer_store_dwordx4 {vr(F0+8,4)}, v{vVS}, {sr(sWS,4)}, s{sT0} offen offset:1024 sc1")
    a(f"buffer_store_dwordx4 {vr(F0+12,4)}, v{vVS}, {sr(sWS,4)}, s{sT0} offen offset:1536 sc1")
    for i in range(16): a(f"v_mul_f32 v{A0+i}, s{sQS}, v{A0+i}")
    for i in range(8): a(f"v_cvt_pk_bf16_f32 v{F0+16+i}, v{A0+2*i}, v{A0+2*i+1}")
    a(f"""
    s_lshr_b32 s{sT0}, s{sT0}, 1
    s_add_u32 s{sT0}, s{sT0}, {WS_Q:#x}
    s_add_u32 s{sT1}, s{sT0}, 0x10000
    buffer_store_dwordx4 {vr(F0+16,4)}, v{vL16}, {sr(sWS,4)}, s{sT0} offen sc1
    buffer_store_dwordx4 {vr(F0+20,4)}, v{vL16}, {sr(sWS,4)}, s{sT1} offen sc1
    """)
    vm.issue("st", 6)
    for n in range(9, 17):
        if n >= 11: vm.wait(("c", n))
        if n == 12:
            vm.wait("st", "guard")
            spin_check(a, vGD, sDB, "0", 1)
        if n == 15: vm.wait("ph")
        a("s_barrier")
        if n == 12: arrive(a, sG, 0, vT)
        if n + 3 <= 15: dma_w(n + 3)
        if n == 13:
            a(f"""
            s_lshl_b32 s{sT0}, s{sW}, 9
            s_mov_b32 m0, s{sT0}
            s_lshl_b32 s{sT1}, s{sG}, 11
            s_add_u32 s{sT1}, s{sT1}, s{sT0}
            v_lshlrev_b32 v{vT}, 2, v{vL}
            buffer_load_dword v{vT}, {sr(sPH,4)}, s{sT1} offen lds
            buffer_load_dword v{vT}, {sr(sPH,4)}, s{sT1} offen offset:256 lds
            """)
            vm.issue("ph", 2)
        if n == 15:
            a(f"""
            s_lshl_b32 s{sT2}, s{sG}, 8
            s_add_u32 s{sT2}, s{sT2}, {WS_CNT:#x}
            buffer_load_dword v{vGD}, off, {sr(sWS,4)}, s{sT2} sc1
            """)
            vm.issue("poll")
    stamp(a, 3)
    vm.all()
    spin_check(a, vGD, sWS, f"s{sT2}", 32)
    stamp(a, 4)
    a(f"""
    s_lshl_b32 s{sT0}, s{sHEAD}, 16
    s_lshl_b32 s{sT1}, s{sQB}, 13
    s_add_u32 s{sT0}, s{sT0}, s{sT1}
    s_lshl_b32 s{sT1}, s{sW}, 11
    s_add_u32 s{sT0}, s{sT0}, s{sT1}
    s_add_u32 s{sT0}, s{sT0}, {WS_Q:#x}
    s_add_u32 m0, s{sT1}, {SPARE}
    s_lshl_b32 s{sT2}, s{sHEAD}, 17
    buffer_load_dwordx4 v{vL16}, {sr(sWS,4)}, s{sT0} offen sc1 lds
    buffer_load_dwordx4 v{vL16}, {sr(sWS,4)}, s{sT0} offen offset:1024 sc1 lds
    s_add_u32 s{sT2}, s{sT2}, s{sT1}
    """)
    vm.issue(("r", 0), 2)
    for r in range(8):
        for hf in range(2):
            off = r * 8192 + hf * 65536
            a(f"s_add_u32 m0, s{sT1}, {off}")
            a(f"s_add_u32 s{sT0}, s{sT2}, {off}")
            a(f"buffer_load_dwordx4 v{vL16}, {sr(sWS,4)}, s{sT0} offen sc1 lds")
            a(f"buffer_load_dwordx4 v{vL16}, {sr(sWS,4)}, s{sT0} offen offset:1024 sc1 lds")
        vm.issue(("r", r), 4)
    a(f"""
    s_lshl_b32 s{sT0}, s{sJ}, 14
    s_and_b32 s{sT1}, s{sW}, 1
    s_lshl_b32 s{sT1}, s{sT1}, 13
    s_add_u32 s{sT0}, s{sT0}, s{sT1}
    v_lshlrev_b32 v{vT}, 7, v{vL}
    s_bitcmp1_b32 s{sW}, 1
    s_cbranch_scc1 L_PFB
    buffer_load_dword v14, v{vT}, {sr(sWOA,4)}, s{sT0} offen
    s_branch L_PFJ
    """)
    a.label("L_PFB")
    a(f"buffer_load_dword v14, v{vT}, {sr(sWOB,4)}, s{sT0} offen")
    a.label("L_PFJ")
    vm.issue("pf")
    vm.wait(("r", 1))
    a("s_barrier")

    a.label("L_P2")
    vm.reset(); lg.reset()
    stamp(a, 5)
    a(f"""
    s_lshr_b32 s{sT0}, s{sW}, 2
    s_lshl_b32 s{sT1}, s{sA}, 1
    s_add_u32 s{sT1}, s{sT1}, s{sT0}
    s_lshl_b32 s{sT1}, s{sT1}, 10
    s_add_u32 s{sT1}, s{sT1}, {SPARE}
    v_add_u32 v{vU}, s{sT1}, v{vL16}
    v_xor_b32 v{vU+1}, 1024, v{vU}
    ds_read_b128 {vr(QF[0],4)}, v{vU}
    ds_read_b128 {vr(QF[1],4)}, v{vU+1}
    ds_read_b128 {vr(KF[1],4)}, v{vL16}
    s_lshl_b32 s{sT0}, s{sT0}, 16
    v_add_u32 v{vKA}, s{sT0}, v{vL16}
    v_and_b32 v{vU}, 15, v{vL}
    v_lshrrev_b32 v{vU+1}, 5, v{vL}
    v_lshl_add_u32 v{vU}, v{vU+1}, 4, v{vU}
    v_lshl_add_u32 v{vVA}, v{vU}, 4, s{sT0}
    ds_read_b128 {vr(KF[0],4)}, v{vKA}
    v_mov_b32 v{vIDX}, 0xdddddddd
    v_and_b32 v{vU+1}, 27, v{vL}
    v_cmp_eq_u32 vcc, 16, v{vU+1}
    v_mov_b32 v{vU+2}, 0x3f803f80
    v_cndmask_b32 v{vU}, 0, v{vU+2}, vcc
    s_waitcnt lgkmcnt(1)
    v_mfma_f32_32x32x16_bf16 {vr(S0,16)}, {vr(KF[1],4)}, {vr(QF[0],4)}, 0
    v_mfma_f32_32x32x16_bf16 {vr(S1,16)}, {vr(KF[1],4)}, {vr(QF[1],4)}, 0
    """)
    for i in range(16): a(f"v_mov_b32 v{VF[0]+i}, v{vU}")
    def rdK(t, buf):
        if t > 31: return
        a(f"ds_read_b128 {vr(KF[buf],4)}, v{vKA} offset:{t*2048}"); lg.issue(("k", t))
    def rdV(t, buf):
        if t > 31: return
        a(f"s_mov_b64 exec, {sr(sVM,2)}")
        a(f"ds_read_b128 {vr(VF[buf],4)}, v{vVA} offset:{t*2048+1024}")
        a(f"ds_read_b128 {vr(VF[buf]+4,4)}, v{vVA} offset:{t*2048+1536}")
        a("s_mov_b64 exec, -1")
        lg.issue(("v", t), 2)
    lg.issue(("k", 0))
    rdK(1, 1); rdV(0, 0)
    for i in range(32): a(f"v_mov_b32 v{O0+i}, 0")
    def max_tree(t, regs, init):
        rest = list(regs)
        if init:
            a(f"v_max3_f32 v{t}, v{rest[0]}, v{rest[1]}, v{rest[2]}"); rest = rest[3:]
        while len(rest) >= 2:
            a(f"v_max3_f32 v{t}, v{rest[0]}, v{rest[1]}, v{t}"); rest = rest[2:]
        if rest: a(f"v_max_f32 v{t}, v{rest[0]}, v{t}")
    def set_negm(t):
        a(f"v_mov_b32 v{t+1}, v{t}")
        a(f"v_permlane32_swap_b32 v{t}, v{t+1}")
        a(f"v_max_f32 v{t}, v{t}, v{t+1}")
        for i in range(16): a(f"v_sub_f32 v{NM+i}, 0, v{t}")
    max_tree(vU, range(S0, S0 + 32), True)
    set_negm(vU)
    def qk(dst, buf, q):
        a(f"v_mfma_f32_32x32x16_bf16 {vr(dst,16)}, {vr(KF[buf],4)}, {vr(QF[q],4)}, {vr(NM,16)}")
    def sm(src, buf, half, o):
        a(f"v_smfmac_f32_32x32x32_bf16 {vr(o,16)}, {vr(VF[buf]+4*half,4)}, {vr(src+8*half,8)}, v{vIDX}")
    lg.wait(("k", 0))
    qk(S0, 0, 0)
    a(f"""
    v_lshrrev_b32 v{vU}, 3, v{vL}
    v_and_b32 v{vU+1}, 7, v{vL}
    v_bfe_u32 v{vU+2}, v{vL}, 4, 1
    v_lshlrev_b32 v{vU+2}, 2, v{vU+2}
    v_xor_b32 v{vU+1}, v{vU+1}, v{vU+2}
    v_lshlrev_b32 v{vU+1}, 4, v{vU+1}
    v_lshl_add_u32 v{vPR}, v{vU}, 10, v{vU+1}
    s_lshl_b32 s{sWOS}, s{sA}, 17
    s_lshl_b32 s{sT0}, s{sQB}, 7
    s_add_u32 s{sWOS}, s{sWOS}, s{sT0}
    v_bfe_u32 v{vU}, v{vL}, 2, 2
    v_lshrrev_b32 v{vU+2}, 1, v{vU}
    v_lshlrev_b32 v{vU+2}, 6, v{vU+2}
    v_lshrrev_b32 v{vU+1}, 5, v{vL}
    v_lshl_add_u32 v{vU}, v{vU+1}, 2, v{vU}
    v_lshl_add_u32 v{vU+2}, v{vU}, 7, v{vU+2}
    v_bfe_u32 v{vU}, v{vL}, 4, 1
    v_lshl_add_u32 v{vU+2}, v{vU}, 5, v{vU+2}
    v_and_b32 v{vU}, 3, v{vL}
    v_lshl_add_u32 v{vU+2}, v{vU}, 3, v{vU+2}
    v_add_u32 v{vWR}, s{sPRIV}, v{vU+2}
    v_xor_b32 v{vWR+1}, 64, v{vWR}
    s_lshl_b32 s{sKVP}, s{sHEAD}, 17
    s_lshr_b32 s{sT0}, s{sW}, 1
    s_lshl_b32 s{sT0}, s{sT0}, 10
    s_add_u32 s{sKVP}, s{sKVP}, s{sT0}
    s_and_b32 s{sT0}, s{sW}, 1
    s_lshl_b32 s{sT0}, s{sT0}, 3
    s_add_u32 s{sKVP}, s{sKVP}, s{sT0}
    s_add_u32 s{sKVP}, s{sKVP}, {WS_KVP:#x}
    """)
    KP, KACC, PQ, AO = 192, 224, 228, 236
    KVF = 192
    vPOLL = vU + 5
    def wo_dma(r):
        R = sWOA if r < 4 else sWOB
        a(f"s_mov_b32 m0, s{sPRIV}")
        for i in range(4):
            a(f"s_add_u32 s{sT0}, s{sWOS}, {(r%4)*32768 + i*(8192-1024)}")
            a(f"buffer_load_dwordx4 v{vPR}, {sr(R,4)}, s{sT0} offen offset:{i*1024} lds")
        vm.issue(("wo", r), 4)
    def wo_read(r):
        vm.wait(("wo", r))
        for st in range(2):
            for p_ in range(2):
                for wh in range(2):
                    a(f"ds_read_b64_tr_b16 {vr(WO+16*r+8*st+4*p_+2*wh,2)}, v{vWR+p_} offset:{st*2048+wh*1024}")
        lg.issue(("wor", r), 8)
    def kp_load(i):
        a(f"s_add_u32 s{sT0}, s{sKVP}, {i*4096}")
        a(f"buffer_load_dwordx2 {vr(KP+2*(i%16),2)}, v{vL16}, {sr(sWS,4)}, s{sT0} offen sc1")
        vm.issue(("kp", i // 16))
    def cnt_off(sreg, base):
        a(f"s_lshl_b32 s{sT2}, s{sreg}, 8")
        a(f"s_add_u32 s{sT2}, s{sT2}, {WS_CNT + base*256:#x}")
    def side(p):
        if p == 6:
            vm.all(); a("s_barrier"); arrive(a, sG, 8, vU)
        if p in (7, 12, 17, 22):
            if p > 7: lg.wait(("wor", (p - 12) // 5))
            wo_dma((p - 7) // 5)
        if p in (11, 16, 21, 26): wo_read((p - 11) // 5)
        if p == 10:
            cnt_off(sG, 8)
            a(f"buffer_load_dword v{vPOLL}, off, {sr(sWS,4)}, s{sT2} sc1"); vm.issue("poll")
        if p == 12:
            vm.wait("poll")
            spin_check(a, vPOLL, sWS, f"s{sT2}", 32)
        if 12 <= p <= 15:
            for i in range(4): kp_load(4 * (p - 12) + i)
        if p == 19 or p == 26:
            vm.wait(("kp", 0 if p == 19 else 1))
            n = 16
            while n > 2:
                for i in range(n):
                    a(f"v_add_f32 v{KP+i}, v{KP+i}, v{KP+n+i}")
                n //= 2
            if p == 19:
                a(f"v_add_f32 v{KACC}, v{KP}, v{KP+2}")
                a(f"v_add_f32 v{KACC+1}, v{KP+1}, v{KP+3}")
            else:
                a(f"v_add_f32 v{KP}, v{KP}, v{KP+2}")
                a(f"v_add_f32 v{KP+1}, v{KP+1}, v{KP+3}")
                a(f"v_add_f32 v{KACC}, v{KACC}, v{KP}")
                a(f"v_add_f32 v{KACC+1}, v{KACC+1}, v{KP+1}")
                a(f"v_cvt_pk_bf16_f32 v{KACC}, v{KACC}, v{KACC+1}")
        if 19 <= p <= 22:
            for i in range(4): kp_load(16 + 4 * (p - 19) + i)
        if p == 23:
            a(f"""
            s_lshl_b32 s{sT0}, s{sHEAD}, 17
            s_lshl_b32 s{sT1}, s{sTILE}, 11
            s_add_u32 s{sT0}, s{sT0}, s{sT1}
            s_add_u32 s{sT0}, s{sT0}, {WS_PQ:#x}
            buffer_load_dwordx4 {vr(PQ,4)}, v{vL16}, {sr(sWS,4)}, s{sT0} offen sc1
            buffer_load_dwordx4 {vr(PQ+4,4)}, v{vL16}, {sr(sWS,4)}, s{sT0} offen offset:1024 sc1
            """)
            vm.issue("pq", 2)
        if p == 27:
            lg.wait(("wor", 3))
            a(f"v_lshl_add_u32 v{vU}, v{vL}, 2, s{sPRIV}")
            a(f"ds_write_b32 v{vU}, v{KACC}"); lg.issue("kx")
            a(f"v_lshlrev_b32 v{vU+1}, 2, v{vL}")
            a(f"v_add_u32 v{vU+1}, {SPARE}, v{vU+1}")
        if p == 28:
            lg.wait("kx"); a("s_barrier")
            for j in range(8): a(f"ds_read_b32 v{KVF+j}, v{vU+1} offset:{j*4096}")
            lg.issue("kvf", 8)
        if p == 29:
            lg.wait("kvf"); vm.wait("pq")
            a(f"v_mfma_f32_32x32x16_bf16 {vr(AO,16)}, {vr(KVF,4)}, {vr(PQ,4)}, 0")
            a(f"v_mfma_f32_32x32x16_bf16 {vr(AO,16)}, {vr(KVF+4,4)}, {vr(PQ+4,4)}, {vr(AO,16)}")
        if p == 30:
            a(f"v_add_f32 v{vU}, {f32(1e-6)}, v{AO+8}")
            a(f"v_rcp_f32 v{vU}, v{vU}")
            a(f"s_lshl_b32 s{sT0}, s{sTILE}, 16")
            for i in range(8): a(f"v_mul_f32 v{AO+i}, v{vU}, v{AO+i}")
            for i in range(4): a(f"v_cvt_pk_bf16_f32 v{AO+i}, v{AO+2*i}, v{AO+2*i+1}")
            a(f"""
            s_lshl_b32 s{sT1}, s{sHEAD}, 10
            s_add_u32 s{sT0}, s{sT0}, s{sT1}
            s_add_u32 s{sT0}, s{sT0}, {WS_O:#x}
            buffer_store_dwordx4 {vr(AO,4)}, v{vL16}, {sr(sWS,4)}, s{sT0} offen sc1
            """)
            vm.issue("oa")
        if p == 35:
            vm.wait("oa"); a("s_barrier"); arrive(a, sQB, 16, vU)
        if p in (36, 41, 46, 51):
            if p > 36: lg.wait(("wor", 4 + (p - 41) // 5))
            wo_dma(4 + (p - 36) // 5)
        if p in (40, 45, 50, 55): wo_read(4 + (p - 40) // 5)
        if p == 58:
            cnt_off(sG, 16)
            a(f"buffer_load_dword v{vPOLL}, off, {sr(sWS,4)}, s{sT2} sc1"); vm.issue("poll")
        if p == 61:
            vm.wait("poll")
            spin_check(a, vPOLL, sWS, f"s{sT2}", 32)
    a.raw(".p2align 3")
    for p in range(64):
        kt, cur = p >> 1, p & 1
        kb = kt & 1
        Sc = S1 if cur else S0
        for i in range(16):
            if cur == 0:
                if i == 2:
                    if p > 0: sm(S1, kb ^ 1, 1, O1)
                    rdV(kt + 1, kb ^ 1)
                if i == 4:
                    qk(S1, kb, 1); rdK(kt + 2, kb)
                if i == 10:
                    lg.wait(("v", kt)); sm(S0, kb, 0, O0)
            else:
                if i == 2: sm(S0, kb, 1, O0)
                if i == 4 and kt < 31:
                    lg.wait(("k", kt + 1)); qk(S0, kb ^ 1, 0)
                if i == 10: sm(S1, kb, 0, O1)
            if i == 7: side(p)
            a(f"v_exp_f32 v{Sc+i}, v{Sc+i}")
    a(f"v_add_u32 v{vU}, s{sPRIV}, v{vL16}")
    a(f"v_xor_b32 v{vU+1}, 16384, v{vU}")
    sm(S1, 1, 1, O1)
    stamp(a, 6)
    a(f"""
    s_lshl_b32 s{sT0}, s{sHEAD}, 1
    s_lshr_b32 s{sT1}, s{sW}, 2
    s_add_u32 s{sT0}, s{sT0}, s{sT1}
    s_lshl_b32 s{sT1}, s{sT0}, 8
    s_add_u32 s{sT1}, s{sT1}, {WS_G:#x}
    s_lshl_b32 s{sKVP}, s{sT0}, 16
    s_lshl_b32 s{sT0}, s{sA}, 13
    s_add_u32 s{sKVP}, s{sKVP}, s{sT0}
    s_add_u32 s{sKVP}, s{sKVP}, {WS_O:#x}
    s_add_u32 s{sT0}, s{sKVP}, 4096
    v_and_b32 v{vU+2}, 31, v{vL}
    v_lshlrev_b32 v{vU+2}, 3, v{vU+2}
    """)
    GV = vKA + 1
    GV = 12
    a(f"buffer_load_dwordx2 {vr(GV,2)}, v{vU+2}, {sr(sWS,4)}, s{sT1} offen sc1"); vm.issue("g")
    a(f"ds_write_b128 v{vU}, {vr(O1,4)}")
    a(f"ds_write_b128 v{vU}, {vr(O1+4,4)} offset:1024")
    a(f"ds_write_b32 v{vU}, v{O1+8} offset:2048")
    lg.all()
    a("s_barrier")
    a(f"ds_read_b128 {vr(O1,4)}, v{vU+1}")
    a(f"ds_read_b128 {vr(O1+4,4)}, v{vU+1} offset:1024")
    a(f"ds_read_b32 v{O1+8}, v{vU+1} offset:2048")
    lg.all()
    for i in range(9): a(f"v_add_f32 v{O0+i}, v{O0+i}, v{O1+i}")
    a(f"""
    v_max3_f32 v{vU}, |v{O0}|, |v{O0+1}|, |v{O0+2}|
    v_max3_f32 v{vU+1}, |v{O0+3}|, |v{O0+4}|, |v{O0+5}|
    v_max3_f32 v{vU}, |v{O0+6}|, |v{O0+7}|, v{vU}
    v_add_f32 v{O1}, v{O0}, v{O0+1}
    v_add_f32 v{O1+1}, v{O0+2}, v{O0+3}
    v_add_f32 v{O1+2}, v{O0+4}, v{O0+5}
    v_add_f32 v{O1+3}, v{O0+6}, v{O0+7}
    v_max_f32 v{vU}, v{vU}, v{vU+1}
    v_add_f32 v{O1}, v{O1}, v{O1+1}
    v_add_f32 v{O1+2}, v{O1+2}, v{O1+3}
    v_mov_b32 v{vU+1}, {f32(2.0**120)}
    v_cmp_nle_f32 s[96:97], v{vU}, v{vU+1}
    v_cmp_u_f32 vcc, v{O1}, v{O1+2}
    v_mov_b32 v{vU}, {f32(2.0**40)}
    v_mov_b32 v{vU+1}, {f32(2.0**-80)}
    s_or_b64 s[96:97], s[96:97], vcc
    v_cmp_nle_f32 vcc, v{O0+8}, v{vU}
    s_or_b64 s[96:97], s[96:97], vcc
    v_cmp_nge_f32 vcc, v{O0+8}, v{vU+1}
    s_or_b64 vcc, s[96:97], vcc
    s_cbranch_vccnz L_FALLBACK
    """)
    a.label("L_FIN")
    a(f"v_rcp_f32 v{vU}, v{O0+8}")
    for i in range(4): a(f"buffer_load_dwordx4 {vr(S0+4*i,4)}, v{vL16}, {sr(sWS,4)}, s{sKVP} offen offset:{i*1024} sc1")
    for i in range(8): a(f"v_mul_f32 v{O0+i}, v{vU}, v{O0+i}")
    for i in range(4): a(f"v_cvt_pk_bf16_f32 v{QF[0]+i}, v{O0+2*i}, v{O0+2*i+1}")
    vm.issue("oa0", 4)
    a(f"""
    s_lshl_b32 s{sT1}, s{sTILE}, 16
    s_lshl_b32 s{sT2}, s{sHEAD}, 10
    s_add_u32 s{sT1}, s{sT1}, s{sT2}
    s_add_u32 s{sT1}, s{sT1}, {WS_O + 0x8000:#x}
    buffer_store_dwordx4 {vr(QF[0],4)}, v{vL16}, {sr(sWS,4)}, s{sT1} offen sc1
    """)
    vm.issue("ob")
    for i in range(4): a(f"buffer_load_dwordx4 {vr(S0+16+4*i,4)}, v{vL16}, {sr(sWS,4)}, s{sT0} offen offset:{i*1024} sc1")
    vm.issue("oa1", 4)
    vm.wait("ob")
    a("s_barrier")
    arrive(a, sQB, 24, vU)
    cnt_off(sG, 24)
    a(f"buffer_load_dword v{vPOLL}, off, {sr(sWS,4)}, s{sT2} sc1"); vm.issue("poll")
    stamp(a, 7)
    CA = [NM, 96]; CB = [128, 144]
    for st in range(8):
        if st == 4: vm.wait("oa1")
        for p_ in range(2):
            c = "0" if st == 0 else vr(CA[p_], 16)
            a(f"v_mfma_f32_32x32x16_bf16 {vr(CA[p_],16)}, {vr(WO+8*st+4*p_,4)}, {vr(S0+4*st,4)}, {c}")
    vm.wait("poll")
    spin_check(a, vPOLL, sWS, f"s{sT2}", 32)
    stamp(a, 8)
    a(f"s_add_u32 s{sT0}, s{sKVP}, 0x8000")
    a(f"s_add_u32 s{sT1}, s{sKVP}, 0x9000")
    for i in range(8):
        a(f"buffer_load_dwordx4 {vr(O0+4*i,4)}, v{vL16}, {sr(sWS,4)}, s{sT0 if i < 4 else sT1} offen offset:{(i%4)*1024} sc1")
        vm.issue(("ob", i))
    for p_ in range(2):
        for i in range(16): a(f"v_mul_f32 v{CA[p_]+i}, v{GV}, v{CA[p_]+i}")
    a(f"""
    v_and_b32 v{vU}, 31, v{vL}
    s_lshr_b32 s{sT2}, s{sW}, 2
    s_lshl_b32 s{sT2}, s{sT2}, 5
    s_lshl_b32 s{sT3}, s{sA}, 6
    s_add_u32 s{sT2}, s{sT2}, s{sT3}
    v_add_u32 v{vU}, s{sT2}, v{vU}
    v_mul_u32_u24 v{vU}, 272, v{vU}
    v_lshrrev_b32 v{vU+1}, 5, v{vL}
    v_lshl_add_u32 v{vU}, v{vU+1}, 4, v{vU}
    v_lshrrev_b32 v{vU+1}, 3, v0
    v_mul_u32_u24 v{vU+2}, 272, v{vU+1}
    v_and_b32 v{vKA}, 7, v0
    v_lshl_add_u32 v{vU+2}, v{vKA}, 5, v{vU+2}
    v_lshlrev_b32 v{vU+1}, 10, v{vU+1}
    v_lshl_add_u32 v{vU+1}, v{vKA}, 4, v{vU+1}
    s_lshl_b32 s{sT2}, s{sHEAD}, 16
    s_lshl_b32 s{sT3}, s{sQB}, 7
    s_add_u32 s{sT2}, s{sT2}, s{sT3}
    """)
    for st in range(8):
        vm.wait(("ob", st))
        for p_ in range(2):
            c = "0" if st == 0 else vr(CB[p_], 16)
            a(f"v_mfma_f32_32x32x16_bf16 {vr(CB[p_],16)}, {vr(WO+64+8*st+4*p_,4)}, {vr(O0+4*st,4)}, {c}")
    for p_ in range(2):
        for q in range(4):
            for i in range(4):
                a(f"v_fmac_f32 v{CA[p_]+4*q+i}, v{GV+1}, v{CB[p_]+4*q+i}")
            a(f"ds_write_b128 v{vU}, {vr(CA[p_]+4*q,4)} offset:{p_*128 + q*32}")
    a("s_waitcnt lgkmcnt(0)")
    a("s_barrier")
    R = S0
    for k in range(4):
        a(f"ds_read_b128 {vr(R+8*k,4)}, v{vU+2} offset:{k*64*272}")
        a(f"ds_read_b128 {vr(R+8*k+4,4)}, v{vU+2} offset:{k*64*272+16}")
    a("s_waitcnt lgkmcnt(4)")
    for i in range(4): a(f"v_pk_add_f32 {vr(R+2*i,2)}, {vr(R+2*i,2)}, {vr(R+8+2*i,2)}")
    a("s_waitcnt lgkmcnt(0)")
    for i in range(4): a(f"v_pk_add_f32 {vr(R+16+2*i,2)}, {vr(R+16+2*i,2)}, {vr(R+24+2*i,2)}")
    for i in range(4): a(f"v_pk_add_f32 {vr(R+2*i,2)}, {vr(R+2*i,2)}, {vr(R+16+2*i,2)}")
    for i in range(4): a(f"v_cvt_pk_bf16_f32 v{R+i}, v{R+2*i}, v{R+2*i+1}")
    a(f"buffer_store_dwordx4 {vr(R,4)}, v{vU+1}, {sr(sOUT,4)}, s{sT2} offen")
    if INSTR:
        a("s_waitcnt vmcnt(0)")
        stamp(a, 9)
        a(f"""
        s_mov_b32 s{sWS+2}, 0x4000000
        s_lshl_b32 s{sT0}, s2, 3
        s_add_u32 s{sT0}, s{sT0}, s{sW}
        s_lshl_b32 s{sT0}, s{sT0}, 8
        s_add_u32 s{sT0}, s{sT0}, {WS_DBG:#x}
        v_lshlrev_b32 v{vU}, 2, v{vL}
        buffer_store_dword v{vST}, v{vU}, {sr(sWS,4)}, s{sT0} offen
        """)
    a.label("L_END")
    a("s_endpgm")
    a.label("L_FALLBACK")
    a(f"""
    v_mov_b32 v{vKA}, v{vL16}
    v_and_b32 v{vVA}, 0xffff, v{vVA}
    v_mov_b32 v{vU}, 0xff800000
    s_mov_b32 s{sCNT}, 0
    """)
    a.label("L_FB_MAX")
    a(f"ds_read_b128 {vr(KF[0],4)}, v{vKA}")
    a("s_waitcnt lgkmcnt(0)")
    a(f"v_mfma_f32_32x32x16_bf16 {vr(S0,16)}, {vr(KF[0],4)}, {vr(QF[0],4)}, 0")
    max_tree(vU, range(S0, S0 + 16), False)
    a(f"""
    v_add_u32 v{vKA}, 2048, v{vKA}
    s_add_u32 s{sCNT}, s{sCNT}, 1
    s_cmp_lt_u32 s{sCNT}, 64
    s_cbranch_scc1 L_FB_MAX
    v_mov_b32 v{vKA}, v{vL16}
    s_mov_b32 s{sCNT}, 0
    """)
    set_negm(vU)
    for i in range(16): a(f"v_mov_b32 v{O0+i}, 0")
    a.label("L_FB_LOOP")
    rdK(0, 0); rdV(0, 0)
    a("s_waitcnt lgkmcnt(0)")
    qk(S0, 0, 0)
    for i in range(16): a(f"v_exp_f32 v{S0+i}, v{S0+i}")
    sm(S0, 0, 0, O0); sm(S0, 0, 1, O0)
    a(f"""
    v_add_u32 v{vKA}, 2048, v{vKA}
    v_add_u32 v{vVA}, 2048, v{vVA}
    s_add_u32 s{sCNT}, s{sCNT}, 1
    s_cmp_lt_u32 s{sCNT}, 64
    s_cbranch_scc1 L_FB_LOOP
    s_branch L_FIN
    """)

def build(path, verbose=False):
    a = Asm()
    gen(a)
    a.finalize(verbose)
    hdr = open(f"cdna_kernels/{NAME}.s.ref").read().split("; @launch")[0]
    hdr += "; @launch grid=(256,1,1) block=(512,1,1) lds=163840\n"
    out = hdr + '.amdgcn_target "amdgcn-amd-amdhsa--gfx950"\n.text\n' + a.text()
    out += "CODE_END:\n.set CODE_SPAN, CODE_END - L_PC - 4\n"
    out += f""".section .rodata,"a"
.p2align 6
.amdhsa_kernel {NAME}_kernel
  .amdhsa_next_free_vgpr 256
  .amdhsa_next_free_sgpr 102
  .amdhsa_accum_offset 256
  .amdhsa_group_segment_fixed_size 0
  .amdhsa_kernarg_size 88
  .amdhsa_user_sgpr_count 2
  .amdhsa_user_sgpr_kernarg_segment_ptr 1
  .amdhsa_system_sgpr_workgroup_id_x 1
.end_amdhsa_kernel
"""
    open(path, "w").write(out)

if __name__ == "__main__":
    build(sys.argv[1], verbose="-v" in sys.argv)
```

```python
import sys, struct
from asmlib import Asm

NAME = "gated_mix__linear_kernel_hedgehog__mha_block__prompt"
LITE = "-l" in sys.argv
INSTR = "-i" in sys.argv or LITE
def f32(x): return "0x%08x" % struct.unpack("<I", struct.pack("<f", x))[0]
LOG2E = 1.4426950408889634
WS_KV, WS_Q, WS_PQ, WS_KVP, WS_O, WS_G, WS_CNT, WS_END = 0x0, 0x400000, 0x600000, 0xA00000, 0xE00000, 0x1200000, 0x1210000, 0x1220000
WS_FLG = WS_CNT + 0x8000
WS_LOC = 0x1400000
WS_DBG = 0x2000000
SPIN_MAX = 400000
def opt(name, default):
    for x in sys.argv:
        if x.startswith(name + "="): return int(x.split("=")[1])
    return default
PD = opt("pd", 3)
FAIR = opt("fair", 3)
NOMF, NORD, NODMA = opt("nomf", 0), opt("nord", 0), opt("nodma", 0)
MAP, LA, SPREAD = opt("map", 0), opt("la", 1), opt("spread", 1)
SB10 = opt("sb10", 26)
NR0 = opt("nr0", 2)
TMO = opt("tmo", 24)
JIT = opt("jit", 0)
SCAL = opt("scal", 0)
ORD = opt("ord", 0)
OBAT, OBSL = opt("obat", 4), opt("obsl", 2)
N1 = opt("n1", 4)
SA0, SA1 = opt("sa0", 16), opt("sa1", 20)
FASTOK = opt("fast", 1)
CK1 = opt("ck1", 42)
LSTAMP = [0, 5, 12, 19, 26, 32, 39, 47, 55, 60]
def vr(a, n=1): return f"v{a}" if n == 1 else f"v[{a}:{a+n-1}]"
def sr(a, n=1): return f"s{a}" if n == 1 else f"s[{a}:{a+n-1}]"

class Cnt:
    def __init__(self, a, name, mx):
        self.a, self.name, self.mx, self.q, self.total = a, name, mx, [], 0
    def issue(self, tag, n=1): self.q += [tag] * n; self.total += n
    def wait(self, *tags):
        idx = max((i for i, t in enumerate(self.q) if t in tags), default=-1)
        if idx < 0: return
        n = len(self.q) - 1 - idx
        self.a(f"s_waitcnt {self.name}({min(n, self.mx)})")
        self.q = self.q[idx + 1:] if n <= self.mx else self.q[len(self.q) - self.mx:]
    def all(self):
        self.a(f"s_waitcnt {self.name}(0)"); self.q = []
    def reset(self): self.q = []

sX, sWB, sWA, sWS, sPH, sGT, sDB, sWOA, sWOB, sOUT = 28, 32, 36, 40, 44, 48, 52, 56, 60, 64
sS1 = 12
sW, sG, sJ, sROT = 68, 69, 70, 71
sT0, sT1, sT2, sT3 = 72, 73, 74, 75
sXB, sC0, sM0X, sM0W = 76, 77, 78, 79
sL, sNL, sQS, sVM = 80, 82, 84, 0
sT, sKVL = 83, 85
sHEAD, sQB, sTILE, sCNT = 88, 89, 90, 91
sPRIV, sWOS, sKVP, sA = 92, 93, 94, 95
sGTOK, sST = 100, 101
sD0, sD1, sPO = 12, 13, 86
sCB, sT3T, sFAST, sFO, sFP, sXO = 4, 5, 6, 7, 8, 9
sG1, sTB = 3, 87
vL, vL16 = 1, 2
vST = 15
vKA, vVA, vIDX, vPR, vWR = 3, 4, 5, 6, 7
vU = 9
vXD0, vXD1, vWD = 9, 10, 11
vKS, vVS = 12, 13
vT = 64
vXA, vWA = 80, 92
A2, A0, A1 = 16, 32, 48
WBUF, WP, XF = 96, 120, 128
NM, S0, S1, O0, O1 = 16, 32, 48, 64, 80
KF = [96, 100]; VF = [104, 112]; QF = [120, 124]
WO = 128
SLOT = 32768
SPARE = 131072

def srd(a, d, base, nbytes):
    a(f"s_mov_b32 s{d}, s{base}")
    a(f"s_mov_b32 s{d+1}, s{base+1}")
    a(f"s_mov_b32 s{d+2}, {nbytes:#x}")
    a(f"s_mov_b32 s{d+3}, 0x20000")

def stamp(a, i):
    if not INSTR or (LITE and i not in (0, 19)): return
    a("s_memtime s[96:97]")
    a("s_memrealtime s[98:99]")
    a("s_waitcnt lgkmcnt(0)")
    a(f"v_writelane_b32 v{vST}, s96, {2*i}")
    a(f"v_writelane_b32 v{vST}, s98, {2*i+1}")

def interleave(*lists):
    out = []
    n = max(len(l) for l in lists)
    for i in range(n):
        for l in lists:
            if i < len(l): out.append(l[i])
    return out

def phi_softmax(P, T, O, scal=0):
    L = _phi(P, T, O)
    if not scal: return L
    R = []
    import re
    for x in L:
        if not x.startswith('v_pk_'): R.append(x); continue
        n = [int(v) for v in re.findall(r'v\[(\d+):', x)]
        hi = 1 if 'op_sel:' in x else 0
        for k in range(2):
            if 'fma' in x: R.append(f'v_fma_f32 v{n[0]+k}, v{n[1]+k}, s{sL}, v{n[2]+hi}')
            elif 'mul' in x: R.append(f'v_mul_f32 v{n[0]+k}, v{n[1]+k}, v{n[2]+hi}')
            else: R.append(f'v_add_f32 v{n[0]+k}, v{n[1]+k}, v{n[2]+k}')
    return R
def _phi(P, T, O):
    L = []
    L.append(f"v_max3_f32 v{T}, v{P}, v{P+1}, v{P+2}")
    L.append(f"v_max3_f32 v{T+1}, v{P+8}, v{P+9}, v{P+10}")
    L.append(f"v_max3_f32 v{T+2}, v{P+3}, v{P+4}, v{P+5}")
    L.append(f"v_max3_f32 v{T+3}, v{P+11}, v{P+12}, v{P+13}")
    L.append(f"v_max3_f32 v{T}, v{P+6}, v{P+7}, v{T}")
    L.append(f"v_max3_f32 v{T+1}, v{P+14}, v{P+15}, v{T+1}")
    L.append(f"v_max_f32 v{T}, v{T}, v{T+2}")
    L.append(f"v_max_f32 v{T+1}, v{T+1}, v{T+3}")
    L.append(f"v_permlane32_swap_b32 v{T}, v{T+1}")
    L.append(f"v_max_f32 v{T}, v{T}, v{T+1}")
    L.append(f"v_mul_f32 v{T}, s{sNL}, v{T}")
    L.append(f"v_mov_b32 v{T+1}, v{T}")
    L.append(f"v_permlane32_swap_b32 v{T}, v{T+1}")
    for i in range(4):
        L.append(f"v_pk_fma_f32 {vr(P+2*i,2)}, {vr(P+2*i,2)}, {sr(sL,2)}, {vr(T,2)} op_sel_hi:[1,0,0]")
    for i in range(4, 8):
        L.append(f"v_pk_fma_f32 {vr(P+2*i,2)}, {vr(P+2*i,2)}, {sr(sL,2)}, {vr(T,2)} op_sel:[0,0,1] op_sel_hi:[1,0,1]")
    for i in range(16):
        L.append(f"v_exp_f32 v{P+i}, v{P+i}")
    L.append(f"v_pk_add_f32 {vr(T,2)}, {vr(P,2)}, {vr(P+2,2)}")
    L.append(f"v_pk_add_f32 {vr(T+2,2)}, {vr(P+4,2)}, {vr(P+6,2)}")
    L.append(f"v_pk_add_f32 {vr(T+4,2)}, {vr(P+8,2)}, {vr(P+10,2)}")
    L.append(f"v_pk_add_f32 {vr(T+6,2)}, {vr(P+12,2)}, {vr(P+14,2)}")
    L.append(f"v_pk_add_f32 {vr(T,2)}, {vr(T,2)}, {vr(T+2,2)}")
    L.append(f"v_pk_add_f32 {vr(T+4,2)}, {vr(T+4,2)}, {vr(T+6,2)}")
    L.append(f"v_add_f32 v{T}, v{T}, v{T+1}")
    L.append(f"v_add_f32 v{T+1}, v{T+4}, v{T+5}")
    L.append(f"v_permlane32_swap_b32 v{T}, v{T+1}")
    L.append(f"v_add_f32 v{T}, v{T}, v{T+1}")
    L.append(f"v_rcp_f32 v{T}, v{T}")
    L.append(f"v_mov_b32 v{T+1}, v{T}")
    L.append(f"v_permlane32_swap_b32 v{T}, v{T+1}")
    for i in range(4):
        L.append(f"v_pk_mul_f32 {vr(P+2*i,2)}, {vr(P+2*i,2)}, {vr(T,2)} op_sel_hi:[1,0]")
    for i in range(4, 8):
        L.append(f"v_pk_mul_f32 {vr(P+2*i,2)}, {vr(P+2*i,2)}, {vr(T,2)} op_sel:[0,1] op_sel_hi:[1,1]")
    for i in range(8):
        L.append(f"v_cvt_pk_bf16_f32 v{O+i}, v{P+2*i}, v{P+2*i+1}")
    return L

_lab = [0]
def newlabel(p):
    _lab[0] += 1
    return f"L{p}{_lab[0]}"

def spin_check(a, vreg, srdreg, soff, target):
    lo, ld = newlabel("sp"), newlabel("sd")
    a(f"s_mov_b32 s{sCNT}, 0")
    a.label(lo)
    a(f"v_readfirstlane_b32 s{sT3}, v{vreg}")
    a(f"s_cmp_ge_u32 s{sT3}, {target}")
    a(f"s_cbranch_scc1 {ld}")
    a(f"buffer_load_dword v{vreg}, off, {sr(srdreg,4)}, {soff} sc1")
    a(f"s_add_u32 s{sCNT}, s{sCNT}, 1")
    a(f"s_cmp_lt_u32 s{sCNT}, {SPIN_MAX}")
    a("s_waitcnt vmcnt(0)")
    a(f"s_cbranch_scc1 {lo}")
    a.label(ld)

class Poll:
    def __init__(self, a, vm, vreg): self.a, self.vm, self.v = a, vm, vreg
    def issue(self, srdreg, sreg, base):
        a = self.a; lab = newlabel("pi")
        a(f"s_cmp_lg_u32 s{sW}, 0"); a(f"s_cbranch_scc1 {lab}")
        if sreg is None: self.off = "0"
        else:
            a(f"s_lshl_b32 s{sPO}, s{sreg}, 8"); a(f"s_add_u32 s{sPO}, s{sPO}, {WS_CNT + base*256:#x}"); self.off = f"s{sPO}"
        a(f"buffer_load_dword v{self.v}, off, {sr(srdreg,4)}, {self.off} sc1")
        a.label(lab)
        self.srd, self.mark = srdreg, self.vm.total
    def check(self, target):
        a = self.a; lab = newlabel("pc")
        a(f"s_cmp_lg_u32 s{sW}, 0"); a(f"s_cbranch_scc1 {lab}")
        a(f"s_waitcnt vmcnt({min(63, self.vm.total - self.mark)})")
        spin_check(a, self.v, self.srd, self.off, target)
        a.label(lab)

def arrive(a, cnt_sreg, base_idx, vtmp):
    lab = newlabel("ar")
    a(f"s_cmp_lg_u32 s{sW}, 0")
    a(f"s_cbranch_scc1 {lab}")
    a(f"s_lshl_b32 s{sT3}, s{cnt_sreg}, 8")
    a(f"s_add_u32 s{sT3}, s{sT3}, {WS_CNT + base_idx*256:#x}")
    a(f"v_mov_b32 v{vtmp}, 1")
    a("s_mov_b64 exec, 1")
    a(f"buffer_atomic_add v{vtmp}, off, {sr(sWS,4)}, s{sT3} sc1")
    a("s_mov_b64 exec, -1")
    a.label(lab)

def gen(a):
    kname = NAME + "_kernel"
    a.raw(f".globl {kname}\n.p2align 8\n.type {kname},@function")
    a.label(kname)
    vm = Cnt(a, "vmcnt", 63); lg = Cnt(a, "lgkmcnt", 15)
    vPOLL = vU + 5
    po = Poll(a, vm, vPOLL)
    a(f"""
    s_cmp_ge_u32 s2, 256
    s_cbranch_scc1 L_END
    s_load_dwordx8 s[4:11], s[0:1], 0
    s_load_dwordx8 s[12:19], s[0:1], 32
    s_load_dwordx4 s[20:23], s[0:1], 64
    s_load_dwordx2 s[24:25], s[0:1], 80
    s_getpc_b64 s[26:27]
    """)
    a.label("L_PC")
    a(f"""
    v_lshrrev_b32 v{vT}, 6, v0
    v_and_b32 v{vL}, 63, v0
    s_and_b32 s{sG}, s2, 7
    v_readfirstlane_b32 s{sW}, v{vT}
    s_lshr_b32 s{sJ}, s2, 3
    """)
    if MAP == 0:
        a(f"""
        s_and_b32 s{sT}, s{sJ}, 1
        s_lshr_b32 s{sTB}, s2, 4
        s_mov_b32 s{sG1}, s{sG}
        s_lshl_b32 s{sT0}, s{sT}, 2
        s_add_u32 s{sROT}, s{sTB}, s{sG}
        s_add_u32 s{sROT}, s{sROT}, s{sT0}
        """)
    elif MAP == 2:
        a(f"""
        s_bfe_u32 s{sT}, s{sJ}, 0x10001
        s_and_b32 s{sT0}, s{sJ}, 1
        s_lshl_b32 s{sTB}, s{sG}, 1
        s_add_u32 s{sTB}, s{sTB}, s{sT0}
        s_lshr_b32 s{sG1}, s{sJ}, 2
        s_lshl_b32 s{sT0}, s{sT0}, 2
        s_add_u32 s{sROT}, s{sG1}, s{sG}
        s_add_u32 s{sROT}, s{sROT}, s{sT0}
        """)
    elif MAP == 84:
        a(f"""
        s_and_b32 s{sT0}, s{sJ}, 3
        s_and_b32 s{sT}, s{sJ}, 1
        s_lshr_b32 s{sT1}, s{sJ}, 2             ; 0..7
        s_and_b32 s{sTB}, s{sG}, 1
        s_lshl_b32 s{sTB}, s{sTB}, 3
        s_add_u32 s{sTB}, s{sTB}, s{sT1}
        s_and_b32 s{sG1}, s{sG}, 6
        s_lshr_b32 s{sT2}, s{sT0}, 1
        s_add_u32 s{sG1}, s{sG1}, s{sT2}
        s_lshl_b32 s{sROT}, s{sT0}, 1
        s_add_u32 s{sROT}, s{sROT}, s{sT1}
        s_lshr_b32 s{sT2}, s{sG}, 1
        s_add_u32 s{sROT}, s{sROT}, s{sT2}
        """)
    elif MAP == 48:
        a(f"""
        s_and_b32 s{sT0}, s{sJ}, 7              ; c
        s_and_b32 s{sT}, s{sJ}, 1
        s_lshr_b32 s{sT1}, s{sJ}, 3             ; 0..3
        s_and_b32 s{sTB}, s{sG}, 3
        s_lshl_b32 s{sTB}, s{sTB}, 2
        s_add_u32 s{sTB}, s{sTB}, s{sT1}
        s_and_b32 s{sG1}, s{sG}, 4
        s_lshr_b32 s{sT2}, s{sT0}, 1
        s_add_u32 s{sG1}, s{sG1}, s{sT2}
        s_lshl_b32 s{sROT}, s{sT1}, 1
        s_add_u32 s{sROT}, s{sROT}, s{sT0}
        s_add_u32 s{sROT}, s{sROT}, s{sG}
        """)
    a(f"""
    v_lshrrev_b32 v{vT}, 3, v{vL}
    v_and_b32 v{vT+1}, 7, v{vL}
    v_lshrrev_b32 v{vT+2}, 4, v{vL}
    v_xor_b32 v{vT+3}, v{vT+1}, v{vT+2}
    v_lshlrev_b32 v{vT+3}, 4, v{vT+3}
    v_lshl_add_u32 v{vXD0}, v{vT}, 10, v{vT+3}
    v_xor_b32 v{vXD1}, 64, v{vXD0}
    v_add_u32 v{vXD1}, {8192-1024}, v{vXD1}
    v_and_b32 v{vT+2}, 1, v{vT+2}
    v_lshlrev_b32 v{vT+2}, 2, v{vT+2}
    v_xor_b32 v{vT+3}, v{vT+1}, v{vT+2}
    v_lshlrev_b32 v{vT+3}, 4, v{vT+3}
    v_mul_u32_u24 v{vWD}, 3072, v{vT}
    v_add_u32 v{vWD}, v{vWD}, v{vT+3}
    v_lshl_add_u32 v{vPR}, v{vT}, 10, v{vT+3}
    s_lshl_b32 s{sXB}, s{sTB}, 17
    s_lshl_b32 s{sT0}, s{sW}, 14
    s_add_u32 s{sXB}, s{sXB}, s{sT0}
    s_lshl_b32 s{sC0}, s{sG1}, 7
    s_mul_i32 s{sT0}, s{sW}, {8*3072}
    s_add_u32 s{sC0}, s{sC0}, s{sT0}        ; g*128 + w*8 rows
    s_lshl_b32 s{sM0X}, s{sW}, 11
    s_lshl_b32 s{sM0W}, s{sW}, 10
    v_lshlrev_b32 v{vL16}, 4, v{vL}
    """)
    if INSTR:
        a(f"v_mov_b32 v{vST}, -1")
        stamp(a, 0)
    a(f"s_cmp_eq_u32 s{sT}, 0")
    a("s_waitcnt lgkmcnt(0)")
    srd(a, sX, 4, 2048*1024)
    srd(a, sWB, 14, 512*3072)
    srd(a, sWA, 6, 512*3072)
    a("s_cbranch_scc0 L_T1")

    def dma_piece(T, u, i):
        if u > 9 or (NODMA and u >= PD): return
        slot = (u % 5) * SLOT
        if u < 8:
            R1 = sWB if T else sWA
            if i == 0:
                a(f"""
                s_add_u32 s{sD0}, s{sROT}, {u}
                s_and_b32 s{sD0}, s{sD0}, 7
                s_lshl_b32 s{sD1}, s{sD0}, 7
                s_add_u32 m0, s{sM0X}, {slot}
                s_add_u32 s{sD1}, s{sD1}, s{sXB}
                buffer_load_dwordx4 v{vXD0}, {sr(sX,4)}, s{sD1} offen lds
                """)
            elif i == 1:
                a(f"buffer_load_dwordx4 v{vXD1}, {sr(sX,4)}, s{sD1} offen offset:1024 lds")
            elif i == 2:
                a(f"""
                s_mul_i32 s{sD0}, s{sD0}, {64*3072}
                s_add_u32 m0, s{sM0W}, {slot + 16384 - 1024*T}
                s_add_u32 s{sD0}, s{sD0}, s{sC0}
                buffer_load_dwordx4 v{vWD}, {sr(sWB,4)}, s{sD0} offen offset:{1024*T} lds
                """)
            else:
                a(f"""
                s_add_u32 m0, s{sM0W}, {slot + 24576 - 1024*(T+1)}
                buffer_load_dwordx4 v{vWD}, {sr(R1,4)}, s{sD0} offen offset:{1024*(T+1)} lds
                """)
        else:
            c2 = 0 if T else 2048
            a(f"""
            s_add_u32 s{sD0}, s{sROT}, {4*(u-8)+i}
            s_and_b32 s{sD0}, s{sD0}, 7
            s_mul_i32 s{sD0}, s{sD0}, {64*3072}
            s_add_u32 m0, s{sM0W}, {slot + i*8192 - c2}
            s_add_u32 s{sD0}, s{sD0}, s{sC0}
            buffer_load_dwordx4 v{vWD}, {sr(sWA,4)}, s{sD0} offen offset:{c2} lds
            """)
        vm.issue(("u", u))
    def dma_unit(T, u):
        for i in range(4): dma_piece(T, u, i)

    def setup(T):
        srd(a, sWOA, 10, 512*1024)
        srd(a, sWOB, 16, 512*1024)
        srd(a, sOUT, 20, 2048*1024)
        srd(a, sDB, 22, 256)
        srd(a, sGT, 18, 1024)
        a(f"""
        s_and_b32 s{sA}, s{sW}, 3
        s_lshr_b32 s{sT1}, s{sW}, 2
        s_lshl_b32 s{sT0}, s{sA}, 12
        v_and_b32 v{vT}, 31, v{vL}
        v_lshrrev_b32 v{vT+1}, 5, v{vL}
        v_bfe_u32 v{vT+2}, v{vL}, 1, 3
        v_xor_b32 v{vT+2}, v{vT+2}, v{vT+1}
        v_lshlrev_b32 v{vT}, 7, v{vT}
        v_add_u32 v{vT}, s{sT0}, v{vT}
        """)
        for j in range(4):
            a(f"v_xor_b32 v{vT+3}, {2*j}, v{vT+2}")
            a(f"v_lshl_add_u32 v{vXA+j}, v{vT+3}, 4, v{vT}")
            a(f"v_add_u32 v{vXA+4+j}, 0x10000, v{vXA+j}")
            a(f"v_add_u32 v{vXA+8+j}, 0x20000, v{vXA+j}")
        a(f"""
        v_bfe_u32 v{vT}, v{vL}, 2, 2            ; r
        v_lshrrev_b32 v{vT+2}, 1, v{vT}
        v_lshlrev_b32 v{vT+2}, 6, v{vT+2}
        v_lshl_add_u32 v{vT+2}, v{vT}, 7, v{vT+2}
        v_bfe_u32 v{vT}, v{vL}, 4, 1
        v_lshl_add_u32 v{vT+2}, v{vT}, 5, v{vT+2}
        v_and_b32 v{vT}, 3, v{vL}
        v_lshl_add_u32 v{vT+2}, v{vT}, 3, v{vT+2}   ; r*128 + (r>>1)*64 + g*32 + c*8
        s_lshl_b32 s{sT0}, s{sT1}, 6
        v_lshl_add_u32 v{vWA}, v{vT+1}, 10, v{vT+2}  ; + 8h rows
        v_xor_b32 v{vWA}, s{sT0}, v{vWA}
        v_add_u32 v{vWA+1}, 0x10000, v{vWA}
        v_add_u32 v{vWA+2}, 0x20000, v{vWA}
        s_lshl_b32 s{sPRIV}, s{sW}, 12
        s_add_u32 s{sPRIV}, s{sPRIV}, {SPARE}
        v_lshl_add_u32 v{vWR}, v{vT+1}, 9, v{vT+2}   ; + 4h rows
        v_add_u32 v{vWR}, s{sPRIV}, v{vWR}
        v_xor_b32 v{vWR+1}, 64, v{vWR}
        s_mov_b32 s{sL}, {f32(LOG2E)}
        s_mov_b32 s{sL+1}, {f32(LOG2E)}
        s_mov_b32 s{sNL}, {f32(-LOG2E)}
        s_mov_b32 s{sQS}, {f32(0.25*LOG2E)}
        s_mov_b32 s{sVM}, 0xffff
        s_mov_b32 s{sVM+1}, 0xffff
        s_lshl_b32 s{sHEAD}, s{sG}, 2
        s_and_b32 s{sT0}, s{sJ}, 3
        s_add_u32 s{sHEAD}, s{sHEAD}, s{sT0}
        s_lshr_b32 s{sQB}, s{sJ}, 2
        s_mov_b32 s{sCB}, s{sQB}
        s_lshl_b32 s{sT3T}, s{sHEAD}, 1
        s_add_u32 s{sT3T}, s{sT3T}, s{sT1}
        s_lshl_b32 s{sTILE}, s{sQB}, 3
        s_lshl_b32 s{sT0}, s{sA}, 1
        s_add_u32 s{sTILE}, s{sTILE}, s{sT0}
        s_add_u32 s{sTILE}, s{sTILE}, s{sT1}
        s_lshl_b32 s{sT0}, s{sT1}, 16
        v_add_u32 v{vKA}, s{sT0}, v{vL16}
        v_and_b32 v{vT}, 15, v{vL}
        v_lshl_add_u32 v{vT}, v{vT+1}, 4, v{vT}
        v_lshl_add_u32 v{vVA}, v{vT}, 4, s{sT0}
        v_mov_b32 v{vIDX}, 0xdddddddd
        s_lshl_b32 s{sKVL}, s{sA}, 11
        s_add_u32 s{sKVL}, s{sKVL}, s{sT0}
        s_lshl_b32 s{sWOS}, s{sA}, 17
        s_lshl_b32 s{sT0}, s{sCB}, 7
        s_add_u32 s{sWOS}, s{sWOS}, s{sT0}
        s_getreg_b32 s{sFAST}, hwreg(HW_REG_XCC_ID, 0, 4)
        s_add_u32 s{sFAST}, s{sFAST}, 1
        s_lshl_b32 s{sXO}, s{sG}, 7
        s_add_u32 s{sXO}, s{sXO}, {WS_FLG:#x}
        s_lshl_b32 s{sFO}, s{sJ}, 2
        s_add_u32 s{sFO}, s{sFO}, s{sXO}
        s_lshl_b32 s{sKVP}, s{sHEAD}, 16
        s_lshr_b32 s{sT0}, s{sW}, 1
        s_lshl_b32 s{sT0}, s{sT0}, 10
        s_add_u32 s{sKVP}, s{sKVP}, s{sT0}
        s_and_b32 s{sT0}, s{sW}, 1
        s_lshl_b32 s{sT0}, s{sT0}, 3
        s_add_u32 s{sKVP}, s{sKVP}, s{sT0}
        s_add_u32 s{sKVP}, s{sKVP}, {WS_KVP:#x}
        s_lshl_b32 s{sGTOK}, s{sQB}, 8
        s_lshr_b32 s{sT0}, s{sHEAD}, 1
        s_lshl_b32 s{sT0}, s{sT0}, 3
        s_add_u32 s{sT0}, s{sT0}, s{sW}
        s_lshl_b32 s{sT0}, s{sT0}, 1
        s_add_u32 s{sGTOK}, s{sGTOK}, s{sT0}
        s_lshl_b32 s{sST}, s{sG1}, 1
        s_add_u32 s{sST}, s{sST}, s{sT1}
        s_lshl_b32 s{sST}, s{sST}, 18
        s_lshl_b32 s{sT0}, s{sTB}, 2
        s_add_u32 s{sT0}, s{sT0}, s{sA}
        s_lshl_b32 s{sT0}, s{sT0}, 11
        s_add_u32 s{sST}, s{sST}, s{sT0}
        v_and_b32 v{vT}, 15, v{vL}
        v_lshlrev_b32 v{vT}, 3, v{vT}
        v_lshl_add_u32 v{vT}, v{vT+1}, 7, v{vT}
        s_lshl_b32 s{sT0}, s{sT1}, 10
        s_add_u32 s{sT0}, s{sT0}, {SPARE}
        v_add_u32 v{vT+14}, s{sT0}, v{vT}
        v_bfe_u32 v{vT}, v{vL}, 4, 1
        v_mul_u32_u24 v{vT+15}, 0x8000, v{vT}
        v_lshl_or_b32 v{vT+15}, v{vT+15}, 16, v{vT+15}
        """)
        if T == 1:
            a(f"""
            v_bfe_u32 v{vT}, v{vL}, 2, 1
            v_bfe_u32 v{vT+3}, v{vL}, 3, 1
            v_and_b32 v{vT+2}, 0x33, v{vL}
            v_lshl_or_b32 v{vT+2}, v{vT}, 3, v{vT+2}
            v_lshl_or_b32 v{vT+2}, v{vT+3}, 2, v{vT+2}
            v_lshlrev_b32 v{vKS}, 4, v{vT+2}
            v_bfe_u32 v{vT}, v{vL}, 4, 1
            v_and_b32 v{vT+2}, 0xffff, v{vVA}
            v_lshl_add_u32 v{vVS}, v{vT}, 17, v{vT+2}
            """)

    def kv_round(r):
        a(f"s_add_u32 s{sT0}, s{sQB}, {r}")
        a(f"s_and_b32 s{sT0}, s{sT0}, 7")
        a(f"s_lshl_b32 s{sT0}, s{sT0}, 14")
        a(f"s_add_u32 m0, s{sKVL}, {r*8192}")
        a(f"s_add_u32 s{sT0}, s{sT0}, s{sXB}")
        a(f"buffer_load_dwordx4 v{vL16}, {sr(sWS,4)}, s{sT0} offen sc1 lds")
        a(f"buffer_load_dwordx4 v{vL16}, {sr(sWS,4)}, s{sT0} offen offset:1024 sc1 lds")
        vm.issue(("r", r), 2)
    def lf_issue():
        a(f"""
        v_and_b32 v{vU}, 31, v{vL}
        v_lshlrev_b32 v{vU}, 2, v{vU}
        buffer_load_dword v{vPOLL}, v{vU}, {sr(sWS,4)}, s{sXO} offen sc1
        """)
        vm.issue("lf")
    def start_kv():
        stamp(a, 22)
        vm.wait("lf")
        lo, ld, l2, l3, l4 = newlabel("sp"), newlabel("sd"), newlabel("sn"), newlabel("sr"), newlabel("sq")
        a(f"s_mov_b32 s{sCNT}, 0")
        a.label(lo)
        a(f"v_cmp_ne_u32 vcc, s{sFAST}, v{vPOLL}")
        if FASTOK: a(f"s_cbranch_vccz {ld}")
        a(f"s_add_u32 s{sCNT}, s{sCNT}, 1")
        a(f"s_cmp_lt_u32 s{sCNT}, {TMO}")
        a(f"s_cbranch_scc1 {l2}")
        a(f"s_lshl_b32 s{sT1}, s{sG}, 8")
        a(f"s_add_u32 s{sT1}, s{sT1}, {WS_CNT:#x}")
        a(f"s_cmp_lg_u32 s{sCNT}, {TMO}")
        a(f"s_cbranch_scc1 {l3}")
        a(f"s_cmp_lg_u32 s{sW}, 0")
        a(f"s_cbranch_scc1 {l3}")
        a(f"v_mov_b32 v{vPOLL}, 1")
        a("s_mov_b64 exec, 1")
        a(f"buffer_atomic_add v{vPOLL}, off, {sr(sWS,4)}, s{sT1} sc1")
        a("s_mov_b64 exec, -1")
        a.label(l3)
        a("s_sleep 16")
        a(f"buffer_load_dword v{vPOLL}, off, {sr(sWS,4)}, s{sT1} sc1")
        a("s_waitcnt vmcnt(0)")
        a(f"v_readfirstlane_b32 s{sT3}, v{vPOLL}")
        a(f"s_cmp_ge_u32 s{sT3}, 32")
        a(f"s_cbranch_scc1 {ld}")
        a.label(l2)
        a(f"buffer_load_dword v{vPOLL}, v{vU}, {sr(sWS,4)}, s{sXO} offen sc1")
        a(f"s_cmp_lt_u32 s{sCNT}, {SPIN_MAX}")
        a("s_waitcnt vmcnt(0)")
        a(f"s_cbranch_scc1 {lo}")
        a.label(ld)
        stamp(a, 4)
        a(f"""
        s_lshl_b32 s{sXB}, s{sHEAD}, 17
        s_lshl_b32 s{sT0}, s{sW}, 11
        s_add_u32 s{sXB}, s{sXB}, s{sT0}
        s_lshl_b32 s{sT0}, s{sHEAD}, 16
        s_lshl_b32 s{sT1}, s{sTILE}, 10
        s_add_u32 s{sT0}, s{sT0}, s{sT1}
        s_add_u32 s{sT0}, s{sT0}, {WS_Q:#x}
        s_xor_b32 s{sT1}, s{sT0}, 1024
        buffer_load_dwordx4 {vr(QF[0],4)}, v{vL16}, {sr(sWS,4)}, s{sT0} offen sc1
        buffer_load_dwordx4 {vr(QF[1],4)}, v{vL16}, {sr(sWS,4)}, s{sT1} offen sc1
        """)
        vm.issue(("r", 0), 2)
        for r in range(NR0): kv_round(r)
    def p2_init():
        Z = 176
        L = [f"v_and_b32 v{vU+1}, 27, v{vL}", f"v_cmp_eq_u32 vcc, 16, v{vU+1}", f"v_mov_b32 v{vU+2}, 0x3f803f80",
             f"v_mov_b64 {vr(Z,2)}, 0", f"v_mov_b64 {vr(Z+2,2)}, 0",
             f"v_cndmask_b32 v{VF[0]}, 0, v{vU+2}, vcc", f"v_cndmask_b32 v{VF[0]+1}, 0, v{vU+2}, vcc",
             f"v_mfma_f32_32x32x16_bf16 {vr(O0,16)}, {vr(Z,4)}, {vr(Z,4)}, 0",
             f"v_mfma_f32_32x32x16_bf16 {vr(O1,16)}, {vr(Z,4)}, {vr(Z,4)}, 0"]
        L += [f"v_mov_b64 {vr(VF[0]+2*i,2)}, {vr(VF[0],2)}" for i in range(1, 8)]
        return L

    def p1(T):
        vm.reset(); lg.reset()
        GX, GW, GR = vT, vT + 8, vT + 12
        dma_unit(T, 0)
        srd(a, sWS, 24, WS_END)
        if T == 0:
            a(f"""
            s_or_b32 s{sT0}, s2, s{sW}
            s_cmp_lg_u32 s{sT0}, 0
            s_cbranch_scc1 L_NOZERO
            v_lshlrev_b32 v{vT}, 8, v{vL}
            v_mov_b32 v{vT+4}, 0
            v_mov_b32 v{vT+5}, 0
            v_mov_b32 v{vT+6}, 0
            v_mov_b32 v{vT+7}, 0
            s_mov_b32 s{sT0}, {WS_CNT:#x}
            buffer_store_dword v{vT+4}, v{vT}, {sr(sWS,4)}, s{sT0} offen sc1
            s_mov_b32 s{sT0}, {WS_FLG:#x}
            """)
            for i in range(2):
                a(f"buffer_store_dwordx4 {vr(vT+4,4)}, v{vL16}, {sr(sWS,4)}, s{sT0 + i//4} offen offset:{(i%4)*1024} sc1")
            a.label("L_NOZERO")
        srd(a, sPH, 8, 32*512)
        a(f"""
        s_lshl_b32 s{sT0}, s{sW}, 8
        s_add_u32 m0, s{sT0}, {SPARE}
        s_lshl_b32 s{sT1}, s{sG1}, 11
        s_add_u32 s{sT1}, s{sT1}, s{sT0}
        v_lshlrev_b32 v{vT}, 2, v{vL}
        buffer_load_dword v{vT}, {sr(sPH,4)}, s{sT1} offen lds
        s_lshl_b32 s{sT0}, s{sJ}, 10
        v_lshlrev_b32 v{vT+1}, 1, v0
        v_and_b32 v{vT+1}, 0x3fc, v{vT+1}
        v_add_u32 v{vT+1}, s{sT0}, v{vT+1}
        v_min_u32 v{vT+1}, CODE_SPAN, v{vT+1}
        global_load_dword v{vPOLL}, v{vT+1}, s[26:27]
        """)
        vm.issue(("u", 0)); vm.issue("pf")
        for u in range(1, PD): dma_unit(T, u)
        setup(T)
        wb = lambda st: WBUF + 8 * (st % 3)
        def rd1(st, part):
            if NORD: return
            u, j = st // 4, st % 4
            slot = u % 5; so = (slot % 2) * SLOT
            if part == 0:
                a(f"ds_read_b128 {vr(XF+4*st,4)}, v{vXA+4*(slot//2)+j} offset:{so}"); lg.issue(("f", st))
            else:
                s_ = part - 1
                for wh in range(2):
                    a(f"ds_read_b64_tr_b16 {vr(wb(st)+4*s_+2*wh,2)}, v{vWA+slot//2} offset:{so + 16384 + s_*8192 + j*2048 + wh*512}")
                lg.issue(("f", st), 2)
        wb2 = lambda s_: WBUF + 8 * ((32 + s_ // 2) % 3) + 4 * (s_ % 2)
        def rd2(s_):
            if s_ > 31: return
            u = 8 + s_ // 16; slot = u % 5; so = (slot % 2) * SLOT
            for wh in range(2):
                a(f"ds_read_b64_tr_b16 {vr(wb2(s_)+2*wh,2)}, v{vWA+slot//2} offset:{so + (s_%16)*2048 + wh*512}")
            lg.issue(("g", s_), 2)
        def mf(A, wreg, st, vtype, first):
            if NOMF and A != A2 and not first: return
            c = "0" if first else vr(A, 16)
            x_, w_ = vr(XF + 4 * st, 4), vr(wreg, 4)
            a(f"v_mfma_f32_32x32x16_bf16 {vr(A,16)}, {x_ if vtype else w_}, {w_ if vtype else x_}, {c}")
        def step1(st, nxt):
            mf(A0, wb(st), st, False, st == 0)
            if nxt: nxt(0)
            mf(A1, wb(st) + 4, st, T == 1, st == 0)
            if nxt: nxt(1)
        def nx1(st):
            def f(h):
                if h == 0: rd1(st, 0)
                rd1(st, h + 1)
            return f
        for u in range(8):
            vm.wait(("u", u)); a("s_barrier")
            if u == 0: stamp(a, 1)
            for part in range(3): rd1(4 * u, part)
            if u == 0:
                for st in (1, 2):
                    for part in range(3): rd1(st, part)
                for i in range(4): a(f"ds_read_b64_tr_b16 {vr(WP+2*i,2)}, v{vT+14} offset:{256*i}")
                lg.issue("wp", 4)
                if LA:
                    for i in range(2 if SPREAD else 4): dma_piece(T, PD, i)
                else:
                    for m in range(PD, 4): dma_unit(T, m)
            else:
                step1(4 * u - 2, nx1(4 * u + 1))
                if LA:
                    for i in range(1 if SPREAD else 4): dma_piece(T, u + PD, i)
                else:
                    if u == 1: dma_unit(T, 4)
                    if u + 4 <= 9: dma_unit(T, u + 4)
                step1(4 * u - 1, nx1(4 * u + 2))
                if LA and SPREAD: dma_piece(T, u + PD, 1)
            if u == 1 and T == 0:
                a(f"""
                s_or_b32 s{sT0}, s2, s{sW}
                s_cmp_lg_u32 s{sT0}, 0
                s_cbranch_scc1 L_NOGUARD
                v_mov_b32 v{vT+1}, 1
                s_mov_b64 exec, 1
                buffer_store_dword v{vT+1}, off, {sr(sDB,4)}, 0 sc1
                s_mov_b64 exec, -1
                L_NOGUARD:
                """)
            if u == 2:
                if T == 1:
                    a(f"""
                    s_lshl_b32 s{sT0}, s{sGTOK}, 10
                    buffer_load_dwordx4 {vr(GX,4)}, v{vL16}, {sr(sX,4)}, s{sT0} offen
                    buffer_load_dwordx4 {vr(GX+4,4)}, v{vL16}, {sr(sX,4)}, s{sT0} offen offset:1024
                    buffer_load_dwordx4 {vr(GW,4)}, v{vL16}, {sr(sGT,4)}, 0 offen
                    """)
                    vm.issue("gate", 3)
                for i in range(8): a(f"v_xor_b32 v{WP+i}, v{vT+15}, v{WP+i}")
            if u == 3 and T == 0:
                t = vT
                a(f"""
                v_bfe_u32 v{t}, v{vL}, 2, 1
                v_lshrrev_b32 v{t+1}, 5, v{vL}
                v_bfe_u32 v{t+2}, v{vL}, 3, 1
                v_bfe_u32 v{t+3}, v{vL}, 1, 1
                v_lshl_add_u32 v{t+2}, v{t+2}, 1, v{t+3}
                v_and_b32 v{t+3}, 1, v{vL}
                v_lshlrev_b32 v{t+3}, 4, v{t+3}
                v_mov_b32 v{t+5}, 0x3f80
                v_cmp_eq_u32 vcc, v{t}, v{t+1}
                v_lshlrev_b32 v{t+3}, v{t+3}, v{t+5}
                v_bfe_u32 v{t}, v{vL}, 4, 1
                v_cndmask_b32 v{t+3}, 0, v{t+3}, vcc
                v_lshl_add_u32 v{t+2}, v{t}, 2, v{t+2}
                """)
            if u == 4 and T == 0:
                t = vT
                for i in range(0, 8, 2):
                    a(f"v_cmp_eq_u32 vcc, {i}, v{t+2}")
                    a(f"v_cmp_eq_u32 s[96:97], {i+1}, v{t+2}")
                    a(f"v_cndmask_b32 v{vT+8+i}, 0, v{t+3}, vcc")
                    a(f"v_cndmask_b32 v{vT+8+i+1}, 0, v{t+3}, s[96:97]")
                a(f"""
                s_lshr_b32 s{sT0}, s{sW}, 2
                s_lshl_b32 s{sT0}, s{sT0}, 16
                s_lshl_b32 s{sT1}, s{sA}, 12
                s_add_u32 s{sT0}, s{sT0}, s{sT1}
                s_add_u32 s{sT0}, s{sT0}, 32768
                v_add_u32 v{vKS}, s{sT0}, v{vL16}
                v_xor_b32 v{vVS}, 256, v{vKS}
                """)
            if u == 6:
                po.issue(sDB, None, 0)
            lg.wait(("f", 4 * u)); step1(4 * u, nx1(4 * u + 3))
            if LA and SPREAD: dma_piece(T, u + PD, 2)
            if u == 7 and T == 1:
                vm.wait("gate")
                for i in range(4):
                    for t in range(2):
                        r = GR + 2 * t
                        a(f"v_dot2_f32_bf16 v{r}, v{GX+4*t+i}, v{GW+i}, {'0' if i == 0 else 'v%d' % r}")
            lg.wait(("f", 4 * u + 1)); step1(4 * u + 1, None)
            if LA and SPREAD: dma_piece(T, u + PD, 3)
            lg.all()
        vm.wait(("u", 8)); a("s_barrier")
        stamp(a, 2)
        rd2(0); rd2(1)
        step1(30, lambda h: rd2(2 + h))
        step1(31, lambda h: rd2(4 + h))
        gate = lambda r: f"""v_add_f32_dpp v{r}, v{r}, v{r} quad_perm:[1,0,3,2] row_mask:0xf bank_mask:0xf
        v_add_f32_dpp v{r}, v{r}, v{r} quad_perm:[2,3,0,1] row_mask:0xf bank_mask:0xf
        v_add_f32_dpp v{r}, v{r}, v{r} row_half_mirror row_mask:0xf bank_mask:0xf
        v_add_f32_dpp v{r}, v{r}, v{r} row_mirror row_mask:0xf bank_mask:0xf
        v_mov_b32 v{r+1}, v{r}
        v_permlane16_swap_b32 v{r}, v{r+1}
        v_add_f32 v{r}, v{r}, v{r+1}
        v_mov_b32 v{r+1}, v{r}
        v_permlane32_swap_b32 v{r}, v{r+1}
        v_add_f32 v{r}, v{r}, v{r+1}
        v_cvt_pk_bf16_f32 v{r}, v{r}, v{r}
        v_and_b32 v{r}, 0xffff0000, v{r}
        v_mul_f32 v{r}, s{sNL}, v{r}
        v_exp_f32 v{r}, v{r}
        v_add_f32 v{r}, 1.0, v{r}
        v_rcp_f32 v{r}, v{r}
        v_cvt_pk_bf16_f32 v{r}, v{r}, v{r}
        v_and_b32 v{r}, 0xffff0000, v{r}
        v_sub_f32 v{r+1}, 1.0, v{r}
        v_cvt_pk_bf16_f32 v{r+1}, v{r+1}, v{r+1}
        v_and_b32 v{r+1}, 0xffff0000, v{r+1}""".split("\n")
        gate_st = [f"s_lshl_b32 s{sT0}, s{sGTOK}, 3\ns_add_u32 s{sT0}, s{sT0}, {WS_G:#x}\ns_mov_b64 exec, 1\n"
                   f"buffer_store_dwordx4 {vr(GR,4)}, off, {sr(sWS,4)}, s{sT0} sc1\ns_mov_b64 exec, -1"]
        E = 80
        if T == 1:
            KPK, VPK = 80, 64
            def sts(b0, b1, fl):
                return [f"buffer_store_dwordx4 {vr(KPK,4)}, v{vKS}, {sr(sWS,4)}, s{b0} offen{fl}",
                        f"buffer_store_dwordx4 {vr(KPK+4,4)}, v{vKS}, {sr(sWS,4)}, s{b1} offen{fl}",
                        f"buffer_store_dwordx4 {vr(VPK,4)}, v{vVS}, {sr(sWS,4)}, s{b0} offen offset:1024{fl}",
                        f"buffer_store_dwordx4 {vr(VPK+4,4)}, v{vVS}, {sr(sWS,4)}, s{b0} offen offset:1536{fl}"]
            lo_ = sts(sST, sT2, " sc1"); gl_ = []
            F = [f"s_add_u32 s{sT2}, s{sST}, 0x20000"]
            F += [f"v_mul_f32 v{A0+i}, s{sQS}, v{A0+i}" for i in range(16)]
            F += [f"v_cvt_pk_bf16_f32 v{VPK+i}, v{A1+2*i}, v{A1+2*i+1}" for i in range(8)]
            F += lo_[2:]
            F += [f"v_cvt_pk_bf16_f32 v{KPK+i}, v{A0+2*i}, v{A0+2*i+1}" for i in range(8)]
            F += lo_[:2]
            F1 = F; F2 = interleave(gate(GR), gate(GR + 2)) + gate_st
        else:
            QPK, KPK = 80, 64
            F = []
            F += [f"v_cvt_pk_bf16_f32 v{QPK+i}, v{A0+2*i}, v{A0+2*i+1}" for i in range(8)]
            F += [f"s_lshr_b32 s{sT2}, s{sST}, 1\ns_add_u32 s{sT0}, s{sT2}, {WS_Q:#x}\ns_add_u32 s{sT1}, s{sT0}, 0x10000\n"
                  f"buffer_store_dwordx4 {vr(QPK,4)}, v{vL16}, {sr(sWS,4)}, s{sT0} offen sc1",
                  f"buffer_store_dwordx4 {vr(QPK+4,4)}, v{vL16}, {sr(sWS,4)}, s{sT1} offen sc1"]
            F += [f"v_cvt_pk_bf16_f32 v{KPK+i}, v{A1+2*i}, v{A1+2*i+1}" for i in range(8)]
            F += [f"v_mfma_f32_32x32x16_bf16 {vr(A0,16)}, {vr(WP,4)}, {vr(KPK,4)}, 0",
                  f"v_mfma_f32_32x32x16_bf16 {vr(A1,16)}, {vr(WP+4,4)}, {vr(KPK+4,4)}, 0"]
            OK_ = 128
            F1 = F
            F2 = interleave(phi_softmax(A0, 64, OK_, SCAL), phi_softmax(A1, 80, OK_ + 8, SCAL))
        fill = {s_: [] for s_ in range(32)}
        n1 = N1 if T else 3
        for i, ins in enumerate(F1): fill[1 + i * n1 // len(F1)].append(ins)
        lo = 1 + n1 + (0 if T else 2)
        for i, ins in enumerate(F2): fill[lo + i * (32 - lo) // len(F2)].append(ins)
        for s_ in range(32):
            SF = SA1 if T else SA0
            if s_ == 10 or s_ == SF:
                if s_ == 10:
                    vm.wait(("u", 9)); po.check(1)
                if s_ == SF:
                    stamp(a, 20); vm.wait("st")
                a("s_barrier")
                if s_ == SF:
                    lab = newlabel("lf")
                    a(f"""
                    s_cmp_lg_u32 s{sW}, 1
                    s_cbranch_scc1 {lab}
                    v_mov_b32 v{vU}, s{sFAST}
                    s_mov_b64 exec, 1
                    buffer_store_dword v{vU}, off, {sr(sWS,4)}, s{sFO}
                    s_mov_b64 exec, -1
                    {lab}:
                    """)
                    stamp(a, 21)
            lg.wait(("g", s_))
            mf(A2, wb2(s_), s_, T == 0, s_ == 0)
            rd2(s_ + 6)
            for ins in fill[s_]:
                a(ins)
                if "buffer_store" in ins: vm.issue("gst" if "exec" in ins else ("st" if "sc1" in ins else "stl"))
            if s_ == SB10:
                lg.all(); a("s_barrier")
            if s_ == 28 and T == 0: lf_issue()
        stamp(a, 3)
        init = p2_init()
        if T == 1:
            FQ, OQ = 128, 152
            for ins in init[:7]: a(ins)
            for i in range(8): a(f"v_cvt_pk_bf16_f32 v{FQ+i}, v{A2+2*i}, v{A2+2*i+1}")
            a(f"v_mfma_f32_32x32x16_bf16 {vr(A0,16)}, {vr(WP,4)}, {vr(FQ,4)}, 0")
            a(f"v_mfma_f32_32x32x16_bf16 {vr(A1,16)}, {vr(WP+4,4)}, {vr(FQ+4,4)}, 0")
            for ins in init[7:]: a(ins)
            lf_issue()
            qs = interleave(phi_softmax(A0, 136, OQ), phi_softmax(A1, 144, OQ + 8))
            for ins in qs[:CK1]: a(ins)
            start_kv()
            for ins in qs[CK1:]: a(ins)
        else:
            ID0, ID1, FV, VM0, VM1, t = vT + 8, vT + 12, 152, 160, 168, 180
            a(f"""
            v_mfma_f32_32x32x16_bf16 {vr(A0,16)}, {vr(OK_,4)}, {vr(ID0,4)}, 0
            v_mfma_f32_32x32x16_bf16 {vr(A1,16)}, {vr(OK_+8,4)}, {vr(ID0,4)}, 0
            v_mfma_f32_32x32x16_bf16 {vr(A0,16)}, {vr(OK_+4,4)}, {vr(ID1,4)}, {vr(A0,16)}
            v_mfma_f32_32x32x16_bf16 {vr(A1,16)}, {vr(OK_+12,4)}, {vr(ID1,4)}, {vr(A1,16)}
            """)
            start_kv()
            a(f"v_mov_b32 v{t}, 0x3f803f80")
            a(f"v_mov_b32 v{t+1}, 0x3f803f80")
            for i in range(8): a(f"v_mov_b64 {vr(VM0+2*i,2)}, {vr(t,2)}")
            a(f"s_mov_b64 exec, {sr(sVM,2)}")
            for i in range(8): a(f"v_cvt_pk_bf16_f32 v{VM0+i}, v{A2+2*i}, v{A2+2*i+1}")
            a(f"s_not_b64 exec, exec")
            for i in range(8): a(f"v_cvt_pk_bf16_f32 v{VM1+i}, v{A2+2*i}, v{A2+2*i+1}")
            a("s_mov_b64 exec, -1")
            for i in range(8): a(f"v_cvt_pk_bf16_f32 v{OK_+i}, v{A0+2*i}, v{A0+2*i+1}")
            for i in range(8): a(f"v_cvt_pk_bf16_f32 v{OK_+8+i}, v{A1+2*i}, v{A1+2*i+1}")
            a(f"""
            v_mfma_f32_32x32x16_bf16 {vr(A0,16)}, {vr(OK_,4)}, {vr(VM0,4)}, 0
            v_mfma_f32_32x32x16_bf16 {vr(A1,16)}, {vr(OK_+8,4)}, {vr(VM1,4)}, 0
            v_mfma_f32_32x32x16_bf16 {vr(A0,16)}, {vr(OK_+4,4)}, {vr(VM0+4,4)}, {vr(A0,16)}
            v_mfma_f32_32x32x16_bf16 {vr(A1,16)}, {vr(OK_+12,4)}, {vr(VM1+4,4)}, {vr(A1,16)}
            """)
            for ins in init: a(ins)
            for q in range(4): a(f"ds_write_b128 v{vKS}, {vr(A0+4*q,4)} offset:{q*1024}")
            for q in range(4): a(f"ds_write_b128 v{vVS}, {vr(A1+4*q,4)} offset:{16384+q*1024}")
            a("s_waitcnt lgkmcnt(0)")
        stamp(a, 23)
        vm.wait(("r", 1))
        a("s_barrier")
    y0 = p1(0)
    a("s_branch L_P2")
    a.label("L_T1")
    y1 = p1(1)

    a.label("L_P2")
    vm.reset(); lg.reset()
    stamp(a, 5)
    def rdK(t, buf):
        if t > 31: return
        a(f"ds_read_b128 {vr(KF[buf],4)}, v{vKA} offset:{t*2048}"); lg.issue(("k", t))
    def rdV(t, buf):
        if t > 31: return
        a(f"s_mov_b64 exec, {sr(sVM,2)}")
        a(f"ds_read_b128 {vr(VF[buf],4)}, v{vVA} offset:{t*2048+1024}")
        a(f"ds_read_b128 {vr(VF[buf]+4,4)}, v{vVA} offset:{t*2048+1536}")
        a("s_mov_b64 exec, -1")
        lg.issue(("v", t), 2)
    a(f"ds_read_b128 {vr(NM,4)}, v{vL16}"); lg.issue("k00")
    rdK(0, 0); rdK(1, 1); rdV(0, 0)
    lg.wait("k00")
    a(f"v_mfma_f32_32x32x16_bf16 {vr(S0,16)}, {vr(NM,4)}, {vr(QF[0],4)}, 0")
    a(f"v_mfma_f32_32x32x16_bf16 {vr(S1,16)}, {vr(NM,4)}, {vr(QF[1],4)}, 0")
    def max_tree(t, regs, init):
        rest = list(regs)
        if init:
            a(f"v_max3_f32 v{t}, v{rest[0]}, v{rest[1]}, v{rest[2]}"); rest = rest[3:]
        while len(rest) >= 2:
            a(f"v_max3_f32 v{t}, v{rest[0]}, v{rest[1]}, v{t}"); rest = rest[2:]
        if rest: a(f"v_max_f32 v{t}, v{rest[0]}, v{t}")
    def set_negm(t):
        a(f"v_mov_b32 v{t+1}, v{t}")
        a(f"v_permlane32_swap_b32 v{t}, v{t+1}")
        a(f"v_max_f32 v{t}, v{t}, v{t+1}")
        for i in range(16): a(f"v_sub_f32 v{NM+i}, 0, v{t}")
    def cond(cmp, f):
        lab = newlabel("cn")
        a(cmp); a(f"s_cbranch_scc1 {lab}"); f(); a.label(lab)
    role_a = lambda f: cond(f"s_cmp_lt_u32 s{sW}, 4", f)
    only_t0 = lambda f: cond(f"s_cmp_lg_u32 s{sT}, 0", f)
    if FAIR: role_a(lambda: a("s_setprio 1"))
    max_tree(vU, range(S0, S0 + 32), True)
    set_negm(vU)
    def qk(dst, buf, q):
        a(f"v_mfma_f32_32x32x16_bf16 {vr(dst,16)}, {vr(KF[buf],4)}, {vr(QF[q],4)}, {vr(NM,16)}")
    def sm(src, buf, half, o):
        a(f"v_smfmac_f32_32x32x32_bf16 {vr(o,16)}, {vr(VF[buf]+4*half,4)}, {vr(src+8*half,8)}, v{vIDX}")
    lg.wait(("k", 0))
    qk(S0, 0, 0)
    KP, PQ, AO = 192, 228, 236
    KVF = 192
    def t0_read():
        a(f"""
        s_lshr_b32 s{sT0}, s{sW}, 2
        s_lshl_b32 s{sT0}, s{sT0}, 16
        s_bfe_u32 s{sT1}, s{sW}, 0x10001
        s_lshl_b32 s{sT1}, s{sT1}, 14
        s_add_u32 s{sT0}, s{sT0}, s{sT1}
        s_and_b32 s{sT1}, s{sW}, 1
        s_lshl_b32 s{sT1}, s{sT1}, 11
        s_add_u32 s{sT0}, s{sT0}, s{sT1}
        s_add_u32 s{sT0}, s{sT0}, 32768
        v_add_u32 v{vU}, s{sT0}, v{vL16}
        """)
        for u in range(2):
            for t in range(4): a(f"ds_read_b128 {vr(KP+16*u+4*t,4)}, v{vU} offset:{u*1024+t*4096}")
    for r in range(NR0, 4): kv_round(r)
    only_t0(t0_read)
    def wo_dma(r):
        R = sWOA if r < 4 else sWOB
        a(f"s_mov_b32 m0, s{sPRIV}")
        for i in range(4):
            a(f"s_add_u32 s{sT0}, s{sWOS}, {(r%4)*32768 + i*(8192-1024)}")
            a(f"buffer_load_dwordx4 v{vPR}, {sr(R,4)}, s{sT0} offen offset:{i*1024} lds")
        vm.issue(("wo", r), 4)
    def wo_read(r):
        vm.wait(("wo", r))
        for st in range(2):
            for p_ in range(2):
                for wh in range(2):
                    a(f"ds_read_b64_tr_b16 {vr(WO+16*r+8*st+4*p_+2*wh,2)}, v{vWR+p_} offset:{st*2048+wh*1024}")
        lg.issue(("wor", r), 8)
    def kp_load(i):
        a(f"s_lshl_b32 s{sT0}, s{sQB}, 1")
        a(f"s_add_u32 s{sT0}, s{sT0}, {i}")
        a(f"s_and_b32 s{sT0}, s{sT0}, 15")
        a(f"s_lshl_b32 s{sT0}, s{sT0}, 12")
        a(f"s_add_u32 s{sT0}, s{sT0}, s{sKVP}")
        a(f"buffer_load_dwordx2 {vr(KP+2*i,2)}, v{vL16}, {sr(sWS,4)}, s{sT0} offen sc1")
        vm.issue("kp")
    P17, P18, PPOLL, P20 = 6, 14, 23, 38
    P21 = P20 + 2
    WD0 = [16, 19, 22, 25]; WD1 = [46, 49, 52, 55]; WL = 2
    def flavored(ins):
        l1, l2 = newlabel("fs"), newlabel("fj")
        a(f"s_cmp_lg_u32 s{sFAST}, 0"); a(f"s_cbranch_scc1 {l1}")
        a(ins + " sc1"); a(f"s_branch {l2}")
        a.label(l1); a(ins); a.label(l2)
    def put_flag(val):
        a(f"v_mov_b32 v{vU}, {val}")
        a("s_mov_b64 exec, 1")
        flavored(f"buffer_store_dword v{vU}, off, {sr(sWS,4)}, s{sFO}")
        a("s_mov_b64 exec, -1")
        vm.issue("flag")
    def flag_spin(vaddr, val):
        lo, ld = newlabel("sp"), newlabel("sd")
        a(f"s_mov_b32 s{sCNT}, 0")
        a.label(lo)
        a(f"v_cmp_gt_u32 vcc, {val}, v{vPOLL}")
        a(f"s_cbranch_vccz {ld}")
        a(f"buffer_load_dword v{vPOLL}, v{vaddr}, {sr(sWS,4)}, s{sFP} offen sc1")
        a(f"s_add_u32 s{sCNT}, s{sCNT}, 1")
        a(f"s_cmp_lt_u32 s{sCNT}, {SPIN_MAX}")
        a("s_waitcnt vmcnt(0)")
        a(f"s_cbranch_scc1 {lo}")
        a.label(ld)
    mark = [0]
    GV = 12
    def side(p):
        if p == 1:
            def f():
                a(f"""
                s_waitcnt lgkmcnt(0)
                s_lshl_b32 s{sT0}, s{sG1}, 2
                s_lshr_b32 s{sT1}, s{sW}, 1
                s_add_u32 s{sT0}, s{sT0}, s{sT1}
                s_lshl_b32 s{sT0}, s{sT0}, 16
                s_lshl_b32 s{sT1}, s{sTB}, 12
                s_add_u32 s{sT0}, s{sT0}, s{sT1}
                s_and_b32 s{sT1}, s{sW}, 1
                s_lshl_b32 s{sT1}, s{sT1}, 11
                s_add_u32 s{sT0}, s{sT0}, s{sT1}
                s_add_u32 s{sT0}, s{sT0}, {WS_KVP:#x}
                """)
                for u in range(2):
                    b = KP + 16 * u
                    for i in range(8): a(f"v_add_f32 v{b+i}, v{b+i}, v{b+8+i}")
                    for i in range(4): a(f"v_add_f32 v{b+i}, v{b+i}, v{b+4+i}")
                    a(f"buffer_store_dwordx4 {vr(b,4)}, v{vL16}, {sr(sWS,4)}, s{sT0} offen offset:{u*1024} sc1")
            only_t0(f)
            OQ = 152
            cond(f"s_cmp_eq_u32 s{sT}, 0", lambda: a(f"""
            s_add_u32 s{sT0}, s{sST}, {WS_PQ:#x}
            s_add_u32 s{sT1}, s{sT0}, 0x20000
            buffer_store_dwordx4 {vr(OQ,4)}, v{vL16}, {sr(sWS,4)}, s{sT0} offen sc1
            buffer_store_dwordx4 {vr(OQ+4,4)}, v{vL16}, {sr(sWS,4)}, s{sT0} offen offset:1024 sc1
            buffer_store_dwordx4 {vr(OQ+8,4)}, v{vL16}, {sr(sWS,4)}, s{sT1} offen sc1
            buffer_store_dwordx4 {vr(OQ+12,4)}, v{vL16}, {sr(sWS,4)}, s{sT1} offen offset:1024 sc1
            """))
            vm.issue("ast", 2)
        if p == P17 + 1:
            a(f"""
            s_lshl_b32 s{sT0}, s{sJ}, 14
            s_lshl_b32 s{sT1}, s{sA}, 12
            s_add_u32 s{sT0}, s{sT0}, s{sT1}
            v_lshlrev_b32 v{vU}, 6, v{vL}
            """)
            cond(f"s_cmp_ge_u32 s{sW}, 4", lambda: a(f"buffer_load_dword v{vPOLL}, v{vU}, {sr(sWOA,4)}, s{sT0} offen"))
            role_a(lambda: a(f"buffer_load_dword v{vPOLL}, v{vU}, {sr(sWOB,4)}, s{sT0} offen"))
            vm.issue("pf")
        if p == P17:
            vm.wait(("r", 3)); a("s_barrier")
            vm.issue("ast2")
        if P17 + 2 <= p < P17 + 6: kv_round(2 + p - P17)
        if p == P18:
            vm.wait("ast2"); a("s_barrier"); arrive(a, sG, 8, vU)
        if JIT and p % 8 == 4:
            k = p // 8
            def f():
                a(f"v_lshlrev_b32 v{vU}, 7, v{vL}")
                a(f"v_add_u32 v{vU}, L_JIT{k}-L_PC, v{vU}")
                a(f"v_min_u32 v{vU}, CODE_SPAN, v{vU}")
                a(f"s_mov_b64 exec, {'-1' if k == 6 else '0xffffff'}")
                a(f"global_load_dword v{vU+2}, v{vU}, s[26:27]")
                a("s_mov_b64 exec, -1")
            if k < 7: cond(f"s_cmp_lg_u32 s{sW}, {k+1}", f)
        if JIT and p % 8 == 0 and p >= 8: a.label(f"L_JIT{p//8-1}")
        if JIT and p == 40:
            cond(f"s_cmp_lg_u32 s{sW}, 7", lambda: a(f"buffer_load_dword v{vU+2}, off, {sr(sOUT,4)}, 0"))
        for half, WD in ((0, WD0), (1, WD1)):
            if p - WL in WD: wo_read(4 * half + WD.index(p - WL))
            if p in WD:
                r = 4 * half + WD.index(p)
                if r not in (0, 4): lg.wait(("wor", r - 1))
                wo_dma(r)
        if p == PPOLL:
            po.issue(sWS, sG, 8)
        b0 = PPOLL + 2
        if p == b0:
            po.check(32)
            vm.wait(("r", 7)); a("s_barrier")
        if b0 <= p < b0 + 8:
            for i in range(2): kp_load(2 * (p - b0) + i)
        if p == b0 + 8:
            a(f"""
            s_lshl_b32 s{sT0}, s{sHEAD}, 17
            s_lshl_b32 s{sT1}, s{sTILE}, 11
            s_add_u32 s{sT0}, s{sT0}, s{sT1}
            s_add_u32 s{sT0}, s{sT0}, {WS_PQ:#x}
            buffer_load_dwordx4 {vr(PQ,4)}, v{vL16}, {sr(sWS,4)}, s{sT0} offen sc1
            buffer_load_dwordx4 {vr(PQ+4,4)}, v{vL16}, {sr(sWS,4)}, s{sT0} offen offset:1024 sc1
            """)
            vm.issue("pq", 2)
        if p == P20 - 2:
            vm.wait("kp")
            n = 16
            while n >= 2:
                for i in range(n): a(f"v_add_f32 v{KP+i}, v{KP+i}, v{KP+n+i}")
                n //= 2
            a(f"v_cvt_pk_bf16_f32 v{KP+8}, v{KP}, v{KP+1}")
        if p == P20 - 1:
            lg.wait(("wor", 3))
            a(f"v_lshl_add_u32 v{vU}, v{vL}, 2, s{sPRIV}")
            a(f"ds_write_b32 v{vU}, v{KP+8}"); lg.issue("kx")
            a(f"v_lshlrev_b32 v{vU+1}, 2, v{vL}")
            a(f"v_add_u32 v{vU+1}, {SPARE}, v{vU+1}")
        if p == P20:
            lg.wait("kx"); a("s_barrier")
            for j in range(8): a(f"ds_read_b32 v{KVF+j}, v{vU+1} offset:{j*4096}")
            lg.issue("kvf", 8)
        if p == P20 + 1:
            lg.wait("kvf"); vm.wait("pq")
            a(f"v_mfma_f32_32x32x16_bf16 {vr(AO,16)}, {vr(KVF,4)}, {vr(PQ,4)}, 0")
            a(f"v_mfma_f32_32x32x16_bf16 {vr(AO,16)}, {vr(KVF+4,4)}, {vr(PQ+4,4)}, {vr(AO,16)}")
        if p == P20 + 2:
            a(f"v_add_f32 v{vU}, {f32(1e-6)}, v{AO+8}")
            a(f"v_rcp_f32 v{vU}, v{vU}")
            a(f"s_lshl_b32 s{sT0}, s{sTILE}, 16")
            for i in range(8): a(f"v_mul_f32 v{AO+i}, v{vU}, v{AO+i}")
            for i in range(4): a(f"v_cvt_pk_bf16_f32 v{AO+i}, v{AO+2*i}, v{AO+2*i+1}")
            a(f"""
            s_lshl_b32 s{sT1}, s{sHEAD}, 10
            s_add_u32 s{sT0}, s{sT0}, s{sT1}
            s_add_u32 s{sT0}, s{sT0}, {WS_O:#x}
            """)
            a(f"buffer_store_dwordx4 {vr(AO,4)}, v{vL16}, {sr(sWS,4)}, s{sT0} offen sc1")
            for i in range(4): a(f"v_mov_b32 v{AO+4+i}, -1")
            a(f"s_add_u32 s{sST}, s{sT0}, 0x8000")
            a(f"buffer_store_dwordx4 {vr(AO+4,4)}, v{vL16}, {sr(sWS,4)}, s{sST} offen sc1")
            vm.issue("oa", 2)
        if p == P21 + 5:
            vm.wait("oa"); a("s_barrier"); arrive(a, sQB, 16, vU)
        if p == 57:
            def f():
                a(f"v_mov_b32 v{vU+1}, s{sG}")
                a(f"v_writelane_b32 v{vU+1}, s{sQB}, 1")
                a(f"v_lshlrev_b32 v{vU+1}, 8, v{vU+1}")
                a(f"s_mov_b32 s{sFP}, {WS_CNT + 16*256:#x}")
                a(f"buffer_load_dword v{vPOLL}, v{vU+1}, {sr(sWS,4)}, s{sFP} offen sc1")
            cond(f"s_cmp_lg_u32 s{sW}, 0", f)
            mark[0] = vm.total
        if p == 60:
            def f():
                a(f"s_waitcnt vmcnt({vm.total - mark[0]})")
                flag_spin(vU + 1, 32)
            cond(f"s_cmp_lg_u32 s{sW}, 0", f)
            a("s_barrier")
            a(f"v_and_b32 v{vU+1}, 31, v{vL}")
            a(f"v_lshlrev_b32 v{vU+1}, 2, v{vU+1}")
            a(f"""
            v_lshlrev_b32 v{vU+1}, 1, v{vU+1}
            s_lshl_b32 s{sT0}, s{sT3T}, 8
            s_add_u32 s{sT0}, s{sT0}, {WS_G:#x}
            s_lshl_b32 s{sT1}, s{sTILE}, 8
            s_add_u32 s{sT1}, s{sT1}, {WS_G:#x}
            buffer_load_dword v{GV}, v{vU+1}, {sr(sWS,4)}, s{sT0} offen sc1
            buffer_load_dword v{GV+1}, v{vU+1}, {sr(sWS,4)}, s{sT1} offen offset:4 sc1
            s_lshl_b32 s{sKVP}, s{sT3T}, 16
            s_lshl_b32 s{sT0}, s{sA}, 13
            s_add_u32 s{sKVP}, s{sKVP}, s{sT0}
            s_add_u32 s{sKVP}, s{sKVP}, {WS_O:#x}
            s_add_u32 s{sXB}, s{sKVP}, 4096
            """)
            vm.issue("g", 2)
        if FAIR:
            if p % 4 == FAIR % 4 and FAIR < 4: role_a(lambda: a("s_setprio 0"))
            if p % 4 == 0 and p: role_a(lambda: a("s_setprio 1"))
    a.raw(".p2align 3")
    for p in range(64):
        kt, cur = p >> 1, p & 1
        kb = kt & 1
        Sc = S1 if cur else S0
        for i in range(16):
            if cur == 0:
                if i == 2:
                    if p > 0: sm(S1, kb ^ 1, 1, O1)
                    rdV(kt + 1, kb ^ 1)
                if i == 4:
                    qk(S1, kb, 1)
                    rdK(kt + 2, kb)
                if i == 10:
                    lg.wait(("v", kt)); sm(S0, kb, 0, O0)
            else:
                if i == 2: sm(S0, kb, 1, O0)
                if i == 4 and kt < 31:
                    lg.wait(("k", kt + 1)); qk(S0, kb ^ 1, 0)
                if i == 10: sm(S1, kb, 0, O1)
            if i == 7: side(p)
            if i == 12 and p in LSTAMP: stamp(a, 6 + LSTAMP.index(p))
            a(f"v_exp_f32 v{Sc+i}, v{Sc+i}")
    a(f"v_add_u32 v{vU}, s{sPRIV}, v{vL16}")
    a(f"v_xor_b32 v{vU+1}, 16384, v{vU}")
    sm(S1, 1, 1, O1)
    stamp(a, 16)
    lg.wait(("wor", 7))
    a(f"ds_write_b128 v{vU}, {vr(O1,4)}")
    a(f"ds_write_b128 v{vU}, {vr(O1+4,4)} offset:1024")
    a(f"ds_write_b32 v{vU}, v{O1+8} offset:2048")
    lg.all()
    a("s_barrier")
    a(f"ds_read_b32 v{O1+8}, v{vU+1} offset:2048")
    a(f"ds_read_b128 {vr(O1,4)}, v{vU+1}")
    a(f"ds_read_b128 {vr(O1+4,4)}, v{vU+1} offset:1024")
    a(f"""
    v_mov_b32 v{vU}, {f32(2.0**40)}
    v_mov_b32 v{vU+1}, {f32(2.0**-80)}
    v_mov_b32 v{vU+2}, 0x207
    s_waitcnt lgkmcnt(2)
    v_add_f32 v{O0+8}, v{O0+8}, v{O1+8}
    v_cmp_nle_f32 s[96:97], v{O0+8}, v{vU}
    v_cmp_nge_f32 vcc, v{O0+8}, v{vU+1}
    s_waitcnt lgkmcnt(0)
    """)
    for i in range(4): a(f"v_pk_add_f32 {vr(O0+2*i,2)}, {vr(O0+2*i,2)}, {vr(O1+2*i,2)}")
    a(f"""
    s_or_b64 s[96:97], s[96:97], vcc
    v_pk_add_f32 {vr(O1,2)}, {vr(O0,2)}, {vr(O0+2,2)}
    v_pk_add_f32 {vr(O1+2,2)}, {vr(O0+4,2)}, {vr(O0+6,2)}
    v_pk_add_f32 {vr(O1,2)}, {vr(O1,2)}, {vr(O1+2,2)}
    v_add_f32 v{O1}, v{O1}, v{O1+1}
    v_cmp_class_f32 vcc, v{O1}, v{vU+2}
    s_or_b64 vcc, s[96:97], vcc
    s_cbranch_vccnz L_FALLBACK
    """)
    a.label("L_FIN")
    a(f"v_rcp_f32 v{vU+1}, v{O0+8}")
    vm.wait("g")
    a(f"v_mul_f32 v{vU+1}, v{vU+1}, v{GV+1}")
    for i in range(4): a(f"v_pk_mul_f32 {vr(O0+2*i,2)}, {vr(O0+2*i,2)}, {vr(vU+1,2)} op_sel_hi:[1,0]")
    for i in range(4): a(f"v_cvt_pk_bf16_f32 v{QF[0]+i}, v{O0+2*i}, v{O0+2*i+1}")
    for i in range(4): a(f"v_min_u32 v{QF[0]+i}, -2, v{QF[0]+i}")
    a(f"buffer_store_dwordx4 {vr(QF[0],4)}, v{vL16}, {sr(sWS,4)}, s{sST} offen sc1")
    vm.issue("ob")
    stamp(a, 17)
    for i in range(8):
        a(f"buffer_load_dwordx4 {vr(S0+4*i,4)}, v{vL16}, {sr(sWS,4)}, s{sKVP if i < 4 else sXB} offen offset:{(i%4)*1024} sc1")
        vm.issue(("oa", i))
    CA = [NM, 96]
    def ob_load(i):
        a(f"buffer_load_dwordx4 {vr(O0+4*i,4)}, v{vL16}, {sr(sWS,4)}, s{sT0 if i < 4 else sT1} offen offset:{(i%4)*1024} sc1")
    a(f"s_add_u32 s{sT0}, s{sKVP}, 0x8000")
    a(f"s_add_u32 s{sT1}, s{sKVP}, 0x9000")
    a("s_barrier")
    a(f"""
    v_and_b32 v{vU}, 31, v{vL}
    s_lshr_b32 s{sT2}, s{sW}, 2
    s_lshl_b32 s{sT2}, s{sT2}, 5
    s_lshl_b32 s{sT3}, s{sA}, 6
    s_add_u32 s{sT2}, s{sT2}, s{sT3}
    v_add_u32 v{vU}, s{sT2}, v{vU}
    v_mul_u32_u24 v{vU}, 272, v{vU}
    v_lshrrev_b32 v{vU+1}, 5, v{vL}
    v_lshl_add_u32 v{vU}, v{vU+1}, 4, v{vU}
    v_lshrrev_b32 v{vU+1}, 3, v0
    v_mul_u32_u24 v{vU+2}, 272, v{vU+1}
    v_and_b32 v{vKA}, 7, v0
    v_lshl_add_u32 v{vU+2}, v{vKA}, 5, v{vU+2}
    v_lshlrev_b32 v{vU+1}, 10, v{vU+1}
    v_lshl_add_u32 v{vU+1}, v{vKA}, 4, v{vU+1}
    s_lshr_b32 s{sT2}, s{sT3T}, 1
    s_lshl_b32 s{sT2}, s{sT2}, 16
    s_lshl_b32 s{sT3}, s{sCB}, 7
    s_add_u32 s{sT2}, s{sT2}, s{sT3}
    """)
    for st in range(8):
        vm.wait(("oa", st))
        for p_ in range(2):
            c = "0" if st == 0 else vr(CA[p_], 16)
            a(f"v_mfma_f32_32x32x16_bf16 {vr(CA[p_],16)}, {vr(WO+8*st+4*p_,4)}, {vr(S0+4*st,4)}, {c}")
        ob_load(st); vm.issue("obl")
    for p_ in range(2):
        for i in range(8): a(f"v_pk_mul_f32 {vr(CA[p_]+2*i,2)}, {vr(CA[p_]+2*i,2)}, {vr(GV,2)} op_sel_hi:[1,0]")
    a(f"s_mov_b32 s{sCNT}, 0")
    a(f"s_mov_b32 s{sFP}, 0")
    a.label("L_OBW")
    a("s_waitcnt vmcnt(0)")
    for st in range(8):
        b = O0 + 4 * st
        a(f"s_bitcmp1_b32 s{sFP}, {st}")
        a(f"s_cbranch_scc1 L_OBN{st}")
        a(f"v_max3_u32 v{vKA}, v{b}, v{b+1}, v{b+2}")
        a(f"v_max_u32 v{vKA}, v{b+3}, v{vKA}")
        a(f"v_cmp_eq_u32 vcc, -1, v{vKA}")
        a(f"s_cbranch_vccz L_OBY{st}")
        if ORD:
            for k in range(st, 8): ob_load(k)
            a("s_branch L_OBN7")
        else:
            ob_load(st)
            a(f"s_branch L_OBN{st}")
        a.label(f"L_OBY{st}")
        for p_ in range(2):
            a(f"v_mfma_f32_32x32x16_bf16 {vr(CA[p_],16)}, {vr(WO+64+8*st+4*p_,4)}, {vr(b,4)}, {vr(CA[p_],16)}")
        a(f"s_bitset1_b32 s{sFP}, {st}")
        a.label(f"L_OBN{st}")
    a(f"s_add_u32 s{sCNT}, s{sCNT}, 1")
    a(f"s_cmp_ge_u32 s{sCNT}, {SPIN_MAX}")
    a("s_cbranch_scc1 L_OBD")
    a(f"s_cmp_lg_u32 s{sFP}, 0xff")
    a("s_cbranch_scc1 L_OBW")
    a.label("L_OBD")
    stamp(a, 18)
    a("s_nop 6")
    for p_ in range(2):
        for q in range(4):
            a(f"ds_write_b128 v{vU}, {vr(CA[p_]+4*q,4)} offset:{p_*128 + q*32}")
    a("s_waitcnt lgkmcnt(0)")
    a("s_barrier")
    R = S0
    for k in range(4):
        a(f"ds_read_b128 {vr(R+8*k,4)}, v{vU+2} offset:{k*64*272}")
        a(f"ds_read_b128 {vr(R+8*k+4,4)}, v{vU+2} offset:{k*64*272+16}")
    a("s_waitcnt lgkmcnt(4)")
    for i in range(4): a(f"v_pk_add_f32 {vr(R+2*i,2)}, {vr(R+2*i,2)}, {vr(R+8+2*i,2)}")
    a("s_waitcnt lgkmcnt(0)")
    for i in range(4): a(f"v_pk_add_f32 {vr(R+16+2*i,2)}, {vr(R+16+2*i,2)}, {vr(R+24+2*i,2)}")
    for i in range(4): a(f"v_pk_add_f32 {vr(R+2*i,2)}, {vr(R+2*i,2)}, {vr(R+16+2*i,2)}")
    for i in range(4): a(f"v_cvt_pk_bf16_f32 v{R+i}, v{R+2*i}, v{R+2*i+1}")
    a(f"buffer_store_dwordx4 {vr(R,4)}, v{vU+1}, {sr(sOUT,4)}, s{sT2} offen sc1")
    if INSTR:
        a("s_waitcnt vmcnt(0)")
        stamp(a, 19)
        a(f"""
        s_mov_b32 s{sWS+2}, 0x4000000
        s_lshl_b32 s{sT0}, s2, 3
        s_add_u32 s{sT0}, s{sT0}, s{sW}
        s_lshl_b32 s{sT0}, s{sT0}, 8
        s_add_u32 s{sT0}, s{sT0}, {WS_DBG:#x}
        v_lshlrev_b32 v{vU}, 2, v{vL}
        buffer_store_dword v{vST}, v{vU}, {sr(sWS,4)}, s{sT0} offen
        """)
    a.label("L_END")
    a("s_endpgm")
    a.label("L_FALLBACK")
    a(f"""
    v_mov_b32 v{vKA}, v{vL16}
    v_and_b32 v{vVA}, 0xffff, v{vVA}
    v_mov_b32 v{vU}, 0xff800000
    s_mov_b32 s{sCNT}, 0
    """)
    a.label("L_FB_MAX")
    a(f"ds_read_b128 {vr(KF[0],4)}, v{vKA}")
    a("s_waitcnt lgkmcnt(0)")
    a(f"v_mfma_f32_32x32x16_bf16 {vr(O1,16)}, {vr(KF[0],4)}, {vr(QF[0],4)}, 0")
    max_tree(vU, range(O1, O1 + 16), False)
    a(f"""
    v_add_u32 v{vKA}, 2048, v{vKA}
    s_add_u32 s{sCNT}, s{sCNT}, 1
    s_cmp_lt_u32 s{sCNT}, 64
    s_cbranch_scc1 L_FB_MAX
    v_mov_b32 v{vKA}, v{vL16}
    s_mov_b32 s{sCNT}, 0
    """)
    set_negm(vU)
    for i in range(16): a(f"v_mov_b32 v{O0+i}, 0")
    a.label("L_FB_LOOP")
    rdK(0, 0); rdV(0, 0)
    a("s_waitcnt lgkmcnt(0)")
    qk(O1, 0, 0)
    for i in range(16): a(f"v_exp_f32 v{O1+i}, v{O1+i}")
    sm(O1, 0, 0, O0); sm(O1, 0, 1, O0)
    a(f"""
    v_add_u32 v{vKA}, 2048, v{vKA}
    v_add_u32 v{vVA}, 2048, v{vVA}
    s_add_u32 s{sCNT}, s{sCNT}, 1
    s_cmp_lt_u32 s{sCNT}, 64
    s_cbranch_scc1 L_FB_LOOP
    s_branch L_FIN
    """)

def build(path, verbose=False):
    a = Asm()
    gen(a)
    a.finalize(verbose)
    hdr = open(f"cdna_kernels/{NAME}.s.ref").read().split("; @launch")[0]
    hdr += "; @launch grid=(256,1,1) block=(512,1,1) lds=163840\n"
    out = hdr + '.amdgcn_target "amdgcn-amd-amdhsa--gfx950"\n.text\n' + a.text()
    out += "CODE_END:\n.set CODE_SPAN, CODE_END - L_PC - 4\n"
    out += f""".section .rodata,"a"
.p2align 6
.amdhsa_kernel {NAME}_kernel
  .amdhsa_next_free_vgpr 256
  .amdhsa_next_free_sgpr 102
  .amdhsa_accum_offset 256
  .amdhsa_group_segment_fixed_size 0
  .amdhsa_kernarg_size 88
  .amdhsa_user_sgpr_count 2
  .amdhsa_user_sgpr_kernarg_segment_ptr 1
  .amdhsa_system_sgpr_workgroup_id_x 1
.end_amdhsa_kernel
"""
    open(path, "w").write(out)

if __name__ == "__main__":
    build(sys.argv[1], verbose="-v" in sys.argv)
```

```python
import sys, struct
from asmlib import Asm

NAME = "gated_mix__linear_kernel_hedgehog__mha_block__prompt"
LITE = "-l" in sys.argv
INSTR = "-i" in sys.argv or LITE
def f32(x): return "0x%08x" % struct.unpack("<I", struct.pack("<f", x))[0]
LOG2E = 1.4426950408889634
WS_KV, WS_Q, WS_PQ, WS_KVP, WS_O, WS_G, WS_CNT, WS_END = 0x0, 0x400000, 0x600000, 0xA00000, 0xE00000, 0x1200000, 0x1210000, 0x1220000
WS_FLG = WS_CNT + 0x8000
WS_LOC = 0x1400000
WS_DBG = 0x2000000
SPIN_MAX = 400000
def opt(name, default):
    for x in sys.argv:
        if x.startswith(name + "="): return int(x.split("=")[1])
    return default
PD = opt("pd", 3)
FAIR = opt("fair", 3)
NOMF, NORD, NODMA = opt("nomf", 0), opt("nord", 0), opt("nodma", 0)
MAP, LA, SPREAD = opt("map", 0), opt("la", 1), opt("spread", 1)
SB10 = opt("sb10", 26)
NR0 = opt("nr0", 2)
TMO = opt("tmo", 24)
JIT = opt("jit", 0)
SCAL = opt("scal", 0)
TLB = opt("tlb", 0)
QS = opt("qs", 1)
NOPF = opt("nopf", 0)
ORD = opt("ord", 1)
OBAT, OBSL = opt("obat", 4), opt("obsl", 2)
N1 = opt("n1", 4)
SA0, SA1 = opt("sa0", 16), opt("sa1", 20)
FASTOK = opt("fast", 1)
CK1 = opt("ck1", 42)
LSTAMP = [0, 5, 12, 19, 26, 32, 39, 47, 55, 60]
def vr(a, n=1): return f"v{a}" if n == 1 else f"v[{a}:{a+n-1}]"
def sr(a, n=1): return f"s{a}" if n == 1 else f"s[{a}:{a+n-1}]"

class Cnt:
    def __init__(self, a, name, mx):
        self.a, self.name, self.mx, self.q, self.total = a, name, mx, [], 0
    def issue(self, tag, n=1): self.q += [tag] * n; self.total += n
    def wait(self, *tags):
        idx = max((i for i, t in enumerate(self.q) if t in tags), default=-1)
        if idx < 0: return
        n = len(self.q) - 1 - idx
        self.a(f"s_waitcnt {self.name}({min(n, self.mx)})")
        self.q = self.q[idx + 1:] if n <= self.mx else self.q[len(self.q) - self.mx:]
    def all(self):
        self.a(f"s_waitcnt {self.name}(0)"); self.q = []
    def reset(self): self.q = []

sX, sWB, sWA, sWS, sPH, sGT, sDB, sWOA, sWOB, sOUT = 28, 32, 36, 40, 44, 48, 52, 56, 60, 64
sS1 = 12
sW, sG, sJ, sROT = 68, 69, 70, 71
sT0, sT1, sT2, sT3 = 72, 73, 74, 75
sXB, sC0, sM0X, sM0W = 76, 77, 78, 79
sL, sNL, sQS, sVM = 80, 82, 84, 0
sT, sKVL = 83, 85
sHEAD, sQB, sTILE, sCNT = 88, 89, 90, 91
sPRIV, sWOS, sKVP, sA = 92, 93, 94, 95
sGTOK, sST = 100, 101
sD0, sD1, sPO = 12, 13, 86
sCB, sT3T, sFAST, sFO, sFP, sXO = 4, 5, 6, 7, 8, 9
sG1, sTB = 3, 87
vL, vL16 = 1, 2
vST = 15
vKA, vVA, vIDX, vPR, vWR = 3, 4, 5, 6, 7
vU = 9
vXD0, vXD1, vWD = 9, 10, 11
vKS, vVS = 12, 13
vT = 64
vXA, vWA = 80, 92
A2, A0, A1 = 16, 32, 48
WBUF, WP, XF = 96, 120, 128
NM, S0, S1, O0, O1 = 16, 32, 48, 64, 80
KF = [96, 100]; VF = [104, 112]; QF = [120, 124]
WO = 128
SLOT = 32768
SPARE = 131072

def srd(a, d, base, nbytes):
    a(f"s_mov_b32 s{d}, s{base}")
    a(f"s_mov_b32 s{d+1}, s{base+1}")
    a(f"s_mov_b32 s{d+2}, {nbytes:#x}")
    a(f"s_mov_b32 s{d+3}, 0x20000")

def stamp(a, i):
    if not INSTR or (LITE and i not in (0, 19)): return
    a("s_memtime s[96:97]")
    a("s_memrealtime s[98:99]")
    a("s_waitcnt lgkmcnt(0)")
    a(f"v_writelane_b32 v{vST}, s96, {2*i}")
    a(f"v_writelane_b32 v{vST}, s98, {2*i+1}")

def interleave(*lists):
    out = []
    n = max(len(l) for l in lists)
    for i in range(n):
        for l in lists:
            if i < len(l): out.append(l[i])
    return out

def phi_softmax(P, T, O, scal=0):
    L = _phi(P, T, O)
    if not scal: return L
    R = []
    import re
    for x in L:
        if not x.startswith('v_pk_'): R.append(x); continue
        n = [int(v) for v in re.findall(r'v\[(\d+):', x)]
        hi = 1 if 'op_sel:' in x else 0
        for k in range(2):
            if 'fma' in x: R.append(f'v_fma_f32 v{n[0]+k}, v{n[1]+k}, s{sL}, v{n[2]+hi}')
            elif 'mul' in x: R.append(f'v_mul_f32 v{n[0]+k}, v{n[1]+k}, v{n[2]+hi}')
            else: R.append(f'v_add_f32 v{n[0]+k}, v{n[1]+k}, v{n[2]+k}')
    return R
def _phi(P, T, O):
    L = []
    L.append(f"v_max3_f32 v{T}, v{P}, v{P+1}, v{P+2}")
    L.append(f"v_max3_f32 v{T+1}, v{P+8}, v{P+9}, v{P+10}")
    L.append(f"v_max3_f32 v{T+2}, v{P+3}, v{P+4}, v{P+5}")
    L.append(f"v_max3_f32 v{T+3}, v{P+11}, v{P+12}, v{P+13}")
    L.append(f"v_max3_f32 v{T}, v{P+6}, v{P+7}, v{T}")
    L.append(f"v_max3_f32 v{T+1}, v{P+14}, v{P+15}, v{T+1}")
    L.append(f"v_max_f32 v{T}, v{T}, v{T+2}")
    L.append(f"v_max_f32 v{T+1}, v{T+1}, v{T+3}")
    L.append(f"v_permlane32_swap_b32 v{T}, v{T+1}")
    L.append(f"v_max_f32 v{T}, v{T}, v{T+1}")
    L.append(f"v_mul_f32 v{T}, s{sNL}, v{T}")
    L.append(f"v_mov_b32 v{T+1}, v{T}")
    L.append(f"v_permlane32_swap_b32 v{T}, v{T+1}")
    for i in range(4):
        L.append(f"v_pk_fma_f32 {vr(P+2*i,2)}, {vr(P+2*i,2)}, {sr(sL,2)}, {vr(T,2)} op_sel_hi:[1,0,0]")
    for i in range(4, 8):
        L.append(f"v_pk_fma_f32 {vr(P+2*i,2)}, {vr(P+2*i,2)}, {sr(sL,2)}, {vr(T,2)} op_sel:[0,0,1] op_sel_hi:[1,0,1]")
    for i in range(16):
        L.append(f"v_exp_f32 v{P+i}, v{P+i}")
    L.append(f"v_pk_add_f32 {vr(T,2)}, {vr(P,2)}, {vr(P+2,2)}")
    L.append(f"v_pk_add_f32 {vr(T+2,2)}, {vr(P+4,2)}, {vr(P+6,2)}")
    L.append(f"v_pk_add_f32 {vr(T+4,2)}, {vr(P+8,2)}, {vr(P+10,2)}")
    L.append(f"v_pk_add_f32 {vr(T+6,2)}, {vr(P+12,2)}, {vr(P+14,2)}")
    L.append(f"v_pk_add_f32 {vr(T,2)}, {vr(T,2)}, {vr(T+2,2)}")
    L.append(f"v_pk_add_f32 {vr(T+4,2)}, {vr(T+4,2)}, {vr(T+6,2)}")
    L.append(f"v_add_f32 v{T}, v{T}, v{T+1}")
    L.append(f"v_add_f32 v{T+1}, v{T+4}, v{T+5}")
    L.append(f"v_permlane32_swap_b32 v{T}, v{T+1}")
    L.append(f"v_add_f32 v{T}, v{T}, v{T+1}")
    L.append(f"v_rcp_f32 v{T}, v{T}")
    L.append(f"v_mov_b32 v{T+1}, v{T}")
    L.append(f"v_permlane32_swap_b32 v{T}, v{T+1}")
    for i in range(4):
        L.append(f"v_pk_mul_f32 {vr(P+2*i,2)}, {vr(P+2*i,2)}, {vr(T,2)} op_sel_hi:[1,0]")
    for i in range(4, 8):
        L.append(f"v_pk_mul_f32 {vr(P+2*i,2)}, {vr(P+2*i,2)}, {vr(T,2)} op_sel:[0,1] op_sel_hi:[1,1]")
    for i in range(8):
        L.append(f"v_cvt_pk_bf16_f32 v{O+i}, v{P+2*i}, v{P+2*i+1}")
    return L

_lab = [0]
def newlabel(p):
    _lab[0] += 1
    return f"L{p}{_lab[0]}"

def spin_check(a, vreg, srdreg, soff, target):
    lo, ld = newlabel("sp"), newlabel("sd")
    a(f"s_mov_b32 s{sCNT}, 0")
    a.label(lo)
    a(f"v_readfirstlane_b32 s{sT3}, v{vreg}")
    a(f"s_cmp_ge_u32 s{sT3}, {target}")
    a(f"s_cbranch_scc1 {ld}")
    a(f"buffer_load_dword v{vreg}, off, {sr(srdreg,4)}, {soff} sc1")
    a(f"s_add_u32 s{sCNT}, s{sCNT}, 1")
    a(f"s_cmp_lt_u32 s{sCNT}, {SPIN_MAX}")
    a("s_waitcnt vmcnt(0)")
    a(f"s_cbranch_scc1 {lo}")
    a.label(ld)

class Poll:
    def __init__(self, a, vm, vreg): self.a, self.vm, self.v = a, vm, vreg
    def issue(self, srdreg, sreg, base):
        a = self.a; lab = newlabel("pi")
        a(f"s_cmp_lg_u32 s{sW}, 0"); a(f"s_cbranch_scc1 {lab}")
        if sreg is None: self.off = "0"
        else:
            a(f"s_lshl_b32 s{sPO}, s{sreg}, 8"); a(f"s_add_u32 s{sPO}, s{sPO}, {WS_CNT + base*256:#x}"); self.off = f"s{sPO}"
        a(f"buffer_load_dword v{self.v}, off, {sr(srdreg,4)}, {self.off} sc1")
        a.label(lab)
        self.srd, self.mark = srdreg, self.vm.total
    def check(self, target):
        a = self.a; lab = newlabel("pc")
        a(f"s_cmp_lg_u32 s{sW}, 0"); a(f"s_cbranch_scc1 {lab}")
        a(f"s_waitcnt vmcnt({min(63, self.vm.total - self.mark)})")
        spin_check(a, self.v, self.srd, self.off, target)
        a.label(lab)

def arrive(a, cnt_sreg, base_idx, vtmp):
    lab = newlabel("ar")
    a(f"s_cmp_lg_u32 s{sW}, 0")
    a(f"s_cbranch_scc1 {lab}")
    a(f"s_lshl_b32 s{sT3}, s{cnt_sreg}, 8")
    a(f"s_add_u32 s{sT3}, s{sT3}, {WS_CNT + base_idx*256:#x}")
    a(f"v_mov_b32 v{vtmp}, 1")
    a("s_mov_b64 exec, 1")
    a(f"buffer_atomic_add v{vtmp}, off, {sr(sWS,4)}, s{sT3} sc1")
    a("s_mov_b64 exec, -1")
    a.label(lab)

def gen(a):
    kname = NAME + "_kernel"
    a.raw(f".globl {kname}\n.p2align 8\n.type {kname},@function")
    a.label(kname)
    vm = Cnt(a, "vmcnt", 63); lg = Cnt(a, "lgkmcnt", 15)
    vPOLL = vU + 5
    po = Poll(a, vm, vPOLL)
    a(f"""
    s_cmp_ge_u32 s2, 256
    s_cbranch_scc1 L_END
    s_load_dwordx8 s[4:11], s[0:1], 0
    s_load_dwordx8 s[12:19], s[0:1], 32
    s_load_dwordx4 s[20:23], s[0:1], 64
    s_load_dwordx2 s[24:25], s[0:1], 80
    s_getpc_b64 s[26:27]
    """)
    a.label("L_PC")
    a(f"""
    v_lshrrev_b32 v{vT}, 6, v0
    v_and_b32 v{vL}, 63, v0
    s_and_b32 s{sG}, s2, 7
    v_readfirstlane_b32 s{sW}, v{vT}
    s_lshr_b32 s{sJ}, s2, 3
    """)
    if MAP == 0:
        a(f"""
        s_and_b32 s{sT}, s{sJ}, 1
        s_lshr_b32 s{sTB}, s2, 4
        s_mov_b32 s{sG1}, s{sG}
        s_lshl_b32 s{sT0}, s{sT}, 2
        s_add_u32 s{sROT}, s{sTB}, s{sG}
        s_add_u32 s{sROT}, s{sROT}, s{sT0}
        """)
    elif MAP == 2:
        a(f"""
        s_bfe_u32 s{sT}, s{sJ}, 0x10001
        s_and_b32 s{sT0}, s{sJ}, 1
        s_lshl_b32 s{sTB}, s{sG}, 1
        s_add_u32 s{sTB}, s{sTB}, s{sT0}
        s_lshr_b32 s{sG1}, s{sJ}, 2
        s_lshl_b32 s{sT0}, s{sT0}, 2
        s_add_u32 s{sROT}, s{sG1}, s{sG}
        s_add_u32 s{sROT}, s{sROT}, s{sT0}
        """)
    elif MAP == 84:
        a(f"""
        s_and_b32 s{sT0}, s{sJ}, 3
        s_and_b32 s{sT}, s{sJ}, 1
        s_lshr_b32 s{sT1}, s{sJ}, 2             ; 0..7
        s_and_b32 s{sTB}, s{sG}, 1
        s_lshl_b32 s{sTB}, s{sTB}, 3
        s_add_u32 s{sTB}, s{sTB}, s{sT1}
        s_and_b32 s{sG1}, s{sG}, 6
        s_lshr_b32 s{sT2}, s{sT0}, 1
        s_add_u32 s{sG1}, s{sG1}, s{sT2}
        s_lshl_b32 s{sROT}, s{sT0}, 1
        s_add_u32 s{sROT}, s{sROT}, s{sT1}
        s_lshr_b32 s{sT2}, s{sG}, 1
        s_add_u32 s{sROT}, s{sROT}, s{sT2}
        """)
    elif MAP == 48:
        a(f"""
        s_and_b32 s{sT0}, s{sJ}, 7              ; c
        s_and_b32 s{sT}, s{sJ}, 1
        s_lshr_b32 s{sT1}, s{sJ}, 3             ; 0..3
        s_and_b32 s{sTB}, s{sG}, 3
        s_lshl_b32 s{sTB}, s{sTB}, 2
        s_add_u32 s{sTB}, s{sTB}, s{sT1}
        s_and_b32 s{sG1}, s{sG}, 4
        s_lshr_b32 s{sT2}, s{sT0}, 1
        s_add_u32 s{sG1}, s{sG1}, s{sT2}
        s_lshl_b32 s{sROT}, s{sT1}, 1
        s_add_u32 s{sROT}, s{sROT}, s{sT0}
        s_add_u32 s{sROT}, s{sROT}, s{sG}
        """)
    a(f"""
    v_lshrrev_b32 v{vT}, 3, v{vL}
    v_and_b32 v{vT+1}, 7, v{vL}
    v_lshrrev_b32 v{vT+2}, 4, v{vL}
    v_xor_b32 v{vT+3}, v{vT+1}, v{vT+2}
    v_lshlrev_b32 v{vT+3}, 4, v{vT+3}
    v_lshl_add_u32 v{vXD0}, v{vT}, 10, v{vT+3}
    v_xor_b32 v{vXD1}, 64, v{vXD0}
    v_add_u32 v{vXD1}, {8192-1024}, v{vXD1}
    v_and_b32 v{vT+2}, 1, v{vT+2}
    v_lshlrev_b32 v{vT+2}, 2, v{vT+2}
    v_xor_b32 v{vT+3}, v{vT+1}, v{vT+2}
    v_lshlrev_b32 v{vT+3}, 4, v{vT+3}
    v_mul_u32_u24 v{vWD}, 3072, v{vT}
    v_add_u32 v{vWD}, v{vWD}, v{vT+3}
    v_lshl_add_u32 v{vPR}, v{vT}, 10, v{vT+3}
    s_lshl_b32 s{sXB}, s{sTB}, 17
    s_lshl_b32 s{sT0}, s{sW}, 14
    s_add_u32 s{sXB}, s{sXB}, s{sT0}
    s_lshl_b32 s{sC0}, s{sG1}, 7
    s_mul_i32 s{sT0}, s{sW}, {8*3072}
    s_add_u32 s{sC0}, s{sC0}, s{sT0}        ; g*128 + w*8 rows
    s_lshl_b32 s{sM0X}, s{sW}, 11
    s_lshl_b32 s{sM0W}, s{sW}, 10
    v_lshlrev_b32 v{vL16}, 4, v{vL}
    """)
    if INSTR:
        a(f"v_mov_b32 v{vST}, -1")
        stamp(a, 0)
    a(f"s_cmp_eq_u32 s{sT}, 0")
    a("s_waitcnt lgkmcnt(0)")
    srd(a, sX, 4, 2048*1024)
    srd(a, sWB, 14, 512*3072)
    srd(a, sWA, 6, 512*3072)
    a("s_cbranch_scc0 L_T1")

    def dma_piece(T, u, i):
        if u > 9 or (NODMA and u >= PD): return
        slot = (u % 5) * SLOT
        if u < 8:
            R1 = sWB if T else sWA
            if i == 0:
                a(f"""
                s_add_u32 s{sD0}, s{sROT}, {u}
                s_and_b32 s{sD0}, s{sD0}, 7
                s_lshl_b32 s{sD1}, s{sD0}, 7
                s_add_u32 m0, s{sM0X}, {slot}
                s_add_u32 s{sD1}, s{sD1}, s{sXB}
                buffer_load_dwordx4 v{vXD0}, {sr(sX,4)}, s{sD1} offen lds
                """)
            elif i == 1:
                a(f"buffer_load_dwordx4 v{vXD1}, {sr(sX,4)}, s{sD1} offen offset:1024 lds")
            elif i == 2:
                a(f"""
                s_mul_i32 s{sD0}, s{sD0}, {64*3072}
                s_add_u32 m0, s{sM0W}, {slot + 16384 - 1024*T}
                s_add_u32 s{sD0}, s{sD0}, s{sC0}
                buffer_load_dwordx4 v{vWD}, {sr(sWB,4)}, s{sD0} offen offset:{1024*T} lds
                """)
            else:
                a(f"""
                s_add_u32 m0, s{sM0W}, {slot + 24576 - 1024*(T+1)}
                buffer_load_dwordx4 v{vWD}, {sr(R1,4)}, s{sD0} offen offset:{1024*(T+1)} lds
                """)
        else:
            c2 = 0 if T else 2048
            a(f"""
            s_add_u32 s{sD0}, s{sROT}, {4*(u-8)+i}
            s_and_b32 s{sD0}, s{sD0}, 7
            s_mul_i32 s{sD0}, s{sD0}, {64*3072}
            s_add_u32 m0, s{sM0W}, {slot + i*8192 - c2}
            s_add_u32 s{sD0}, s{sD0}, s{sC0}
            buffer_load_dwordx4 v{vWD}, {sr(sWA,4)}, s{sD0} offen offset:{c2} lds
            """)
        vm.issue(("u", u))
    def dma_unit(T, u):
        for i in range(4): dma_piece(T, u, i)

    def setup(T):
        srd(a, sWOA, 10, 512*1024)
        srd(a, sWOB, 16, 512*1024)
        srd(a, sOUT, 20, 2048*1024)
        srd(a, sDB, 22, 256)
        srd(a, sGT, 18, 1024)
        a(f"""
        s_and_b32 s{sA}, s{sW}, 3
        s_lshr_b32 s{sT1}, s{sW}, 2
        s_lshl_b32 s{sT0}, s{sA}, 12
        v_and_b32 v{vT}, 31, v{vL}
        v_lshrrev_b32 v{vT+1}, 5, v{vL}
        v_bfe_u32 v{vT+2}, v{vL}, 1, 3
        v_xor_b32 v{vT+2}, v{vT+2}, v{vT+1}
        v_lshlrev_b32 v{vT}, 7, v{vT}
        v_add_u32 v{vT}, s{sT0}, v{vT}
        """)
        for j in range(4):
            a(f"v_xor_b32 v{vT+3}, {2*j}, v{vT+2}")
            a(f"v_lshl_add_u32 v{vXA+j}, v{vT+3}, 4, v{vT}")
            a(f"v_add_u32 v{vXA+4+j}, 0x10000, v{vXA+j}")
            a(f"v_add_u32 v{vXA+8+j}, 0x20000, v{vXA+j}")
        a(f"""
        v_bfe_u32 v{vT}, v{vL}, 2, 2            ; r
        v_lshrrev_b32 v{vT+2}, 1, v{vT}
        v_lshlrev_b32 v{vT+2}, 6, v{vT+2}
        v_lshl_add_u32 v{vT+2}, v{vT}, 7, v{vT+2}
        v_bfe_u32 v{vT}, v{vL}, 4, 1
        v_lshl_add_u32 v{vT+2}, v{vT}, 5, v{vT+2}
        v_and_b32 v{vT}, 3, v{vL}
        v_lshl_add_u32 v{vT+2}, v{vT}, 3, v{vT+2}   ; r*128 + (r>>1)*64 + g*32 + c*8
        s_lshl_b32 s{sT0}, s{sT1}, 6
        v_lshl_add_u32 v{vWA}, v{vT+1}, 10, v{vT+2}  ; + 8h rows
        v_xor_b32 v{vWA}, s{sT0}, v{vWA}
        v_add_u32 v{vWA+1}, 0x10000, v{vWA}
        v_add_u32 v{vWA+2}, 0x20000, v{vWA}
        s_lshl_b32 s{sPRIV}, s{sW}, 12
        s_add_u32 s{sPRIV}, s{sPRIV}, {SPARE}
        v_lshl_add_u32 v{vWR}, v{vT+1}, 9, v{vT+2}   ; + 4h rows
        v_add_u32 v{vWR}, s{sPRIV}, v{vWR}
        v_xor_b32 v{vWR+1}, 64, v{vWR}
        s_mov_b32 s{sL}, {f32(LOG2E)}
        s_mov_b32 s{sL+1}, {f32(LOG2E)}
        s_mov_b32 s{sNL}, {f32(-LOG2E)}
        s_mov_b32 s{sQS}, {f32(0.25*LOG2E)}
        s_mov_b32 s{sVM}, 0xffff
        s_mov_b32 s{sVM+1}, 0xffff
        s_lshl_b32 s{sHEAD}, s{sG}, 2
        s_and_b32 s{sT0}, s{sJ}, 3
        s_add_u32 s{sHEAD}, s{sHEAD}, s{sT0}
        s_lshr_b32 s{sQB}, s{sJ}, 2
        s_mov_b32 s{sCB}, s{sQB}
        s_lshl_b32 s{sT3T}, s{sHEAD}, 1
        s_add_u32 s{sT3T}, s{sT3T}, s{sT1}
        s_lshl_b32 s{sTILE}, s{sQB}, 3
        s_lshl_b32 s{sT0}, s{sA}, 1
        s_add_u32 s{sTILE}, s{sTILE}, s{sT0}
        s_add_u32 s{sTILE}, s{sTILE}, s{sT1}
        s_lshl_b32 s{sT0}, s{sT1}, 16
        v_add_u32 v{vKA}, s{sT0}, v{vL16}
        v_and_b32 v{vT}, 15, v{vL}
        v_lshl_add_u32 v{vT}, v{vT+1}, 4, v{vT}
        v_lshl_add_u32 v{vVA}, v{vT}, 4, s{sT0}
        v_mov_b32 v{vIDX}, 0xdddddddd
        s_lshl_b32 s{sKVL}, s{sA}, 11
        s_add_u32 s{sKVL}, s{sKVL}, s{sT0}
        s_lshl_b32 s{sWOS}, s{sA}, 17
        s_lshl_b32 s{sT0}, s{sCB}, 7
        s_add_u32 s{sWOS}, s{sWOS}, s{sT0}
        s_getreg_b32 s{sFAST}, hwreg(HW_REG_XCC_ID, 0, 4)
        s_add_u32 s{sFAST}, s{sFAST}, 1
        s_lshl_b32 s{sXO}, s{sG}, 7
        s_add_u32 s{sXO}, s{sXO}, {WS_FLG:#x}
        s_lshl_b32 s{sFO}, s{sJ}, 2
        s_add_u32 s{sFO}, s{sFO}, s{sXO}
        s_lshl_b32 s{sKVP}, s{sHEAD}, 16
        s_lshr_b32 s{sT0}, s{sW}, 1
        s_lshl_b32 s{sT0}, s{sT0}, 10
        s_add_u32 s{sKVP}, s{sKVP}, s{sT0}
        s_and_b32 s{sT0}, s{sW}, 1
        s_lshl_b32 s{sT0}, s{sT0}, 3
        s_add_u32 s{sKVP}, s{sKVP}, s{sT0}
        s_add_u32 s{sKVP}, s{sKVP}, {WS_KVP:#x}
        s_lshl_b32 s{sGTOK}, s{sQB}, 8
        s_lshr_b32 s{sT0}, s{sHEAD}, 1
        s_lshl_b32 s{sT0}, s{sT0}, 3
        s_add_u32 s{sT0}, s{sT0}, s{sW}
        s_lshl_b32 s{sT0}, s{sT0}, 1
        s_add_u32 s{sGTOK}, s{sGTOK}, s{sT0}
        s_lshl_b32 s{sST}, s{sG1}, 1
        s_add_u32 s{sST}, s{sST}, s{sT1}
        s_lshl_b32 s{sST}, s{sST}, 18
        s_lshl_b32 s{sT0}, s{sTB}, 2
        s_add_u32 s{sT0}, s{sT0}, s{sA}
        s_lshl_b32 s{sT0}, s{sT0}, 11
        s_add_u32 s{sST}, s{sST}, s{sT0}
        v_and_b32 v{vT}, 15, v{vL}
        v_lshlrev_b32 v{vT}, 3, v{vT}
        v_lshl_add_u32 v{vT}, v{vT+1}, 7, v{vT}
        s_lshl_b32 s{sT0}, s{sT1}, 10
        s_add_u32 s{sT0}, s{sT0}, {SPARE}
        v_add_u32 v{vT+14}, s{sT0}, v{vT}
        v_bfe_u32 v{vT}, v{vL}, 4, 1
        v_mul_u32_u24 v{vT+15}, 0x8000, v{vT}
        v_lshl_or_b32 v{vT+15}, v{vT+15}, 16, v{vT+15}
        """)
        if T == 1:
            a(f"""
            v_bfe_u32 v{vT}, v{vL}, 2, 1
            v_bfe_u32 v{vT+3}, v{vL}, 3, 1
            v_and_b32 v{vT+2}, 0x33, v{vL}
            v_lshl_or_b32 v{vT+2}, v{vT}, 3, v{vT+2}
            v_lshl_or_b32 v{vT+2}, v{vT+3}, 2, v{vT+2}
            v_lshlrev_b32 v{vKS}, 4, v{vT+2}
            v_bfe_u32 v{vT}, v{vL}, 4, 1
            v_and_b32 v{vT+2}, 0xffff, v{vVA}
            v_lshl_add_u32 v{vVS}, v{vT}, 17, v{vT+2}
            """)

    def kv_round(r):
        a(f"s_add_u32 s{sT0}, s{sQB}, {r}")
        a(f"s_and_b32 s{sT0}, s{sT0}, 7")
        a(f"s_lshl_b32 s{sT0}, s{sT0}, 14")
        a(f"s_add_u32 m0, s{sKVL}, {r*8192}")
        a(f"s_add_u32 s{sT0}, s{sT0}, s{sXB}")
        a(f"buffer_load_dwordx4 v{vL16}, {sr(sWS,4)}, s{sT0} offen sc1 lds")
        a(f"buffer_load_dwordx4 v{vL16}, {sr(sWS,4)}, s{sT0} offen offset:1024 sc1 lds")
        vm.issue(("r", r), 2)
    def lf_issue():
        a(f"""
        v_and_b32 v{vU}, 31, v{vL}
        v_lshlrev_b32 v{vU}, 2, v{vU}
        buffer_load_dword v{vPOLL}, v{vU}, {sr(sWS,4)}, s{sXO} offen sc1
        """)
        vm.issue("lf")
    def start_kv():
        stamp(a, 22)
        vm.wait("lf")
        lo, ld, l2, l3, l4 = newlabel("sp"), newlabel("sd"), newlabel("sn"), newlabel("sr"), newlabel("sq")
        a(f"s_mov_b32 s{sCNT}, 0")
        a.label(lo)
        a(f"v_cmp_ne_u32 vcc, s{sFAST}, v{vPOLL}")
        if FASTOK: a(f"s_cbranch_vccz {ld}")
        a(f"s_add_u32 s{sCNT}, s{sCNT}, 1")
        a(f"s_cmp_lt_u32 s{sCNT}, {TMO}")
        a(f"s_cbranch_scc1 {l2}")
        a(f"s_lshl_b32 s{sT1}, s{sG}, 8")
        a(f"s_add_u32 s{sT1}, s{sT1}, {WS_CNT:#x}")
        a(f"s_cmp_lg_u32 s{sCNT}, {TMO}")
        a(f"s_cbranch_scc1 {l3}")
        a(f"s_cmp_lg_u32 s{sW}, 0")
        a(f"s_cbranch_scc1 {l3}")
        a(f"v_mov_b32 v{vPOLL}, 1")
        a("s_mov_b64 exec, 1")
        a(f"buffer_atomic_add v{vPOLL}, off, {sr(sWS,4)}, s{sT1} sc1")
        a("s_mov_b64 exec, -1")
        a.label(l3)
        a("s_sleep 16")
        a(f"buffer_load_dword v{vPOLL}, off, {sr(sWS,4)}, s{sT1} sc1")
        a("s_waitcnt vmcnt(0)")
        a(f"v_readfirstlane_b32 s{sT3}, v{vPOLL}")
        a(f"s_cmp_ge_u32 s{sT3}, 32")
        a(f"s_cbranch_scc1 {ld}")
        a.label(l2)
        a(f"buffer_load_dword v{vPOLL}, v{vU}, {sr(sWS,4)}, s{sXO} offen sc1")
        a(f"s_cmp_lt_u32 s{sCNT}, {SPIN_MAX}")
        a("s_waitcnt vmcnt(0)")
        a(f"s_cbranch_scc1 {lo}")
        a.label(ld)
        stamp(a, 4)
        a(f"""
        s_lshl_b32 s{sXB}, s{sHEAD}, 17
        s_lshl_b32 s{sT0}, s{sW}, 11
        s_add_u32 s{sXB}, s{sXB}, s{sT0}
        s_lshl_b32 s{sT0}, s{sHEAD}, 16
        s_lshl_b32 s{sT1}, s{sTILE}, 10
        s_add_u32 s{sT0}, s{sT0}, s{sT1}
        s_add_u32 s{sT0}, s{sT0}, {WS_Q:#x}
        s_xor_b32 s{sT1}, s{sT0}, 1024
        buffer_load_dwordx4 {vr(QF[0],4)}, v{vL16}, {sr(sWS,4)}, s{sT0} offen sc1
        buffer_load_dwordx4 {vr(QF[1],4)}, v{vL16}, {sr(sWS,4)}, s{sT1} offen sc1
        """)
        vm.issue(("r", 0), 2)
        for r in range(NR0): kv_round(r)
    def p2_init():
        Z = 176
        L = [f"v_and_b32 v{vU+1}, 27, v{vL}", f"v_cmp_eq_u32 vcc, 16, v{vU+1}", f"v_mov_b32 v{vU+2}, 0x3f803f80",
             f"v_mov_b64 {vr(Z,2)}, 0", f"v_mov_b64 {vr(Z+2,2)}, 0",
             f"v_cndmask_b32 v{VF[0]}, 0, v{vU+2}, vcc", f"v_cndmask_b32 v{VF[0]+1}, 0, v{vU+2}, vcc",
             f"v_mfma_f32_32x32x16_bf16 {vr(O0,16)}, {vr(Z,4)}, {vr(Z,4)}, 0",
             f"v_mfma_f32_32x32x16_bf16 {vr(O1,16)}, {vr(Z,4)}, {vr(Z,4)}, 0"]
        L += [f"v_mov_b64 {vr(VF[0]+2*i,2)}, {vr(VF[0],2)}" for i in range(1, 8)]
        return L

    def p1(T):
        vm.reset(); lg.reset()
        GX, GW, GR = vT, vT + 8, vT + 12
        dma_unit(T, 0)
        srd(a, sWS, 24, WS_END)
        if T == 0:
            a(f"""
            s_or_b32 s{sT0}, s2, s{sW}
            s_cmp_lg_u32 s{sT0}, 0
            s_cbranch_scc1 L_NOZERO
            v_lshlrev_b32 v{vT}, 8, v{vL}
            v_mov_b32 v{vT+4}, 0
            v_mov_b32 v{vT+5}, 0
            v_mov_b32 v{vT+6}, 0
            v_mov_b32 v{vT+7}, 0
            s_mov_b32 s{sT0}, {WS_CNT:#x}
            buffer_store_dword v{vT+4}, v{vT}, {sr(sWS,4)}, s{sT0} offen sc1
            s_mov_b32 s{sT0}, {WS_FLG:#x}
            """)
            for i in range(2):
                a(f"buffer_store_dwordx4 {vr(vT+4,4)}, v{vL16}, {sr(sWS,4)}, s{sT0 + i//4} offen offset:{(i%4)*1024} sc1")
            a.label("L_NOZERO")
        srd(a, sPH, 8, 32*512)
        a(f"""
        s_lshl_b32 s{sT0}, s{sW}, 8
        s_add_u32 m0, s{sT0}, {SPARE}
        s_lshl_b32 s{sT1}, s{sG1}, 11
        s_add_u32 s{sT1}, s{sT1}, s{sT0}
        v_lshlrev_b32 v{vT}, 2, v{vL}
        buffer_load_dword v{vT}, {sr(sPH,4)}, s{sT1} offen lds
        s_lshl_b32 s{sT0}, s{sJ}, 10
        v_lshlrev_b32 v{vT+1}, 1, v0
        v_and_b32 v{vT+1}, 0x3fc, v{vT+1}
        v_add_u32 v{vT+1}, s{sT0}, v{vT+1}
        v_min_u32 v{vT+1}, CODE_SPAN, v{vT+1}
        """)
        vm.issue(("u", 0))
        if not NOPF:
            a(f"global_load_dword v{vPOLL}, v{vT+1}, s[26:27]"); vm.issue("pf")
        for u in range(1, PD): dma_unit(T, u)
        setup(T)
        if TLB:
            lab = newlabel("tl")
            a(f"""
            s_cmp_lg_u32 s{sW}, 2
            s_cbranch_scc1 {lab}
            v_lshlrev_b32 v{vT}, 21, v{vL}
            s_lshl_b32 s{sT0}, s{sJ}, 16
            s_mov_b64 exec, 0x3ff
            buffer_load_dword v{vPOLL}, v{vT}, {sr(sWS,4)}, s{sT0} offen
            s_mov_b64 exec, 1
            buffer_load_dword v{vPOLL}, off, {sr(sOUT,4)}, s{sT0}
            s_lshl_b32 s{sT0}, s{sJ}, 14
            buffer_load_dword v{vPOLL}, off, {sr(sWOA,4)}, s{sT0}
            buffer_load_dword v{vPOLL}, off, {sr(sWOB,4)}, s{sT0}
            buffer_load_dword v{vPOLL}, off, {sr(sDB,4)}, 0
            buffer_load_dword v{vPOLL}, off, {sr(sGT,4)}, 0
            s_mov_b64 exec, -1
            {lab}:
            """)
        wb = lambda st: WBUF + 8 * (st % 3)
        def rd1(st, part):
            if NORD: return
            u, j = st // 4, st % 4
            slot = u % 5; so = (slot % 2) * SLOT
            if part == 0:
                a(f"ds_read_b128 {vr(XF+4*st,4)}, v{vXA+4*(slot//2)+j} offset:{so}"); lg.issue(("f", st))
            else:
                s_ = part - 1
                for wh in range(2):
                    a(f"ds_read_b64_tr_b16 {vr(wb(st)+4*s_+2*wh,2)}, v{vWA+slot//2} offset:{so + 16384 + s_*8192 + j*2048 + wh*512}")
                lg.issue(("f", st), 2)
        wb2 = lambda s_: WBUF + 8 * ((32 + s_ // 2) % 3) + 4 * (s_ % 2)
        def rd2(s_):
            if s_ > 31: return
            u = 8 + s_ // 16; slot = u % 5; so = (slot % 2) * SLOT
            for wh in range(2):
                a(f"ds_read_b64_tr_b16 {vr(wb2(s_)+2*wh,2)}, v{vWA+slot//2} offset:{so + (s_%16)*2048 + wh*512}")
            lg.issue(("g", s_), 2)
        def mf(A, wreg, st, vtype, first):
            if NOMF and A != A2 and not first: return
            c = "0" if first else vr(A, 16)
            x_, w_ = vr(XF + 4 * st, 4), vr(wreg, 4)
            a(f"v_mfma_f32_32x32x16_bf16 {vr(A,16)}, {x_ if vtype else w_}, {w_ if vtype else x_}, {c}")
        def step1(st, nxt):
            mf(A0, wb(st), st, False, st == 0)
            if nxt: nxt(0)
            mf(A1, wb(st) + 4, st, T == 1, st == 0)
            if nxt: nxt(1)
        def nx1(st):
            def f(h):
                if h == 0: rd1(st, 0)
                rd1(st, h + 1)
            return f
        for u in range(8):
            vm.wait(("u", u)); a("s_barrier")
            if u == 0: stamp(a, 1)
            for part in range(3): rd1(4 * u, part)
            if u == 0:
                for st in (1, 2):
                    for part in range(3): rd1(st, part)
                for i in range(4): a(f"ds_read_b64_tr_b16 {vr(WP+2*i,2)}, v{vT+14} offset:{256*i}")
                lg.issue("wp", 4)
                if LA:
                    for i in range(2 if SPREAD else 4): dma_piece(T, PD, i)
                else:
                    for m in range(PD, 4): dma_unit(T, m)
            else:
                step1(4 * u - 2, nx1(4 * u + 1))
                if LA:
                    for i in range(1 if SPREAD else 4): dma_piece(T, u + PD, i)
                else:
                    if u == 1: dma_unit(T, 4)
                    if u + 4 <= 9: dma_unit(T, u + 4)
                step1(4 * u - 1, nx1(4 * u + 2))
                if LA and SPREAD: dma_piece(T, u + PD, 1)
            if u == 1 and T == 0:
                a(f"""
                s_or_b32 s{sT0}, s2, s{sW}
                s_cmp_lg_u32 s{sT0}, 0
                s_cbranch_scc1 L_NOGUARD
                v_mov_b32 v{vT+1}, 1
                s_mov_b64 exec, 1
                buffer_store_dword v{vT+1}, off, {sr(sDB,4)}, 0 sc1
                s_mov_b64 exec, -1
                L_NOGUARD:
                """)
            if u == 2:
                if T == 1:
                    a(f"""
                    s_lshl_b32 s{sT0}, s{sGTOK}, 10
                    buffer_load_dwordx4 {vr(GX,4)}, v{vL16}, {sr(sX,4)}, s{sT0} offen
                    buffer_load_dwordx4 {vr(GX+4,4)}, v{vL16}, {sr(sX,4)}, s{sT0} offen offset:1024
                    buffer_load_dwordx4 {vr(GW,4)}, v{vL16}, {sr(sGT,4)}, 0 offen
                    """)
                    vm.issue("gate", 3)
                for i in range(8): a(f"v_xor_b32 v{WP+i}, v{vT+15}, v{WP+i}")
            if u == 3 and T == 0:
                t = vT
                a(f"""
                v_bfe_u32 v{t}, v{vL}, 2, 1
                v_lshrrev_b32 v{t+1}, 5, v{vL}
                v_bfe_u32 v{t+2}, v{vL}, 3, 1
                v_bfe_u32 v{t+3}, v{vL}, 1, 1
                v_lshl_add_u32 v{t+2}, v{t+2}, 1, v{t+3}
                v_and_b32 v{t+3}, 1, v{vL}
                v_lshlrev_b32 v{t+3}, 4, v{t+3}
                v_mov_b32 v{t+5}, 0x3f80
                v_cmp_eq_u32 vcc, v{t}, v{t+1}
                v_lshlrev_b32 v{t+3}, v{t+3}, v{t+5}
                v_bfe_u32 v{t}, v{vL}, 4, 1
                v_cndmask_b32 v{t+3}, 0, v{t+3}, vcc
                v_lshl_add_u32 v{t+2}, v{t}, 2, v{t+2}
                """)
            if u == 4 and T == 0:
                t = vT
                for i in range(0, 8, 2):
                    a(f"v_cmp_eq_u32 vcc, {i}, v{t+2}")
                    a(f"v_cmp_eq_u32 s[96:97], {i+1}, v{t+2}")
                    a(f"v_cndmask_b32 v{vT+8+i}, 0, v{t+3}, vcc")
                    a(f"v_cndmask_b32 v{vT+8+i+1}, 0, v{t+3}, s[96:97]")
                a(f"""
                s_lshr_b32 s{sT0}, s{sW}, 2
                s_lshl_b32 s{sT0}, s{sT0}, 16
                s_lshl_b32 s{sT1}, s{sA}, 12
                s_add_u32 s{sT0}, s{sT0}, s{sT1}
                s_add_u32 s{sT0}, s{sT0}, 32768
                v_add_u32 v{vKS}, s{sT0}, v{vL16}
                v_xor_b32 v{vVS}, 256, v{vKS}
                """)
            if u == 6:
                po.issue(sDB, None, 0)
            lg.wait(("f", 4 * u)); step1(4 * u, nx1(4 * u + 3))
            if LA and SPREAD: dma_piece(T, u + PD, 2)
            if u == 7 and T == 1:
                vm.wait("gate")
                for i in range(4):
                    for t in range(2):
                        r = GR + 2 * t
                        a(f"v_dot2_f32_bf16 v{r}, v{GX+4*t+i}, v{GW+i}, {'0' if i == 0 else 'v%d' % r}")
            lg.wait(("f", 4 * u + 1)); step1(4 * u + 1, None)
            if LA and SPREAD: dma_piece(T, u + PD, 3)
            lg.all()
        vm.wait(("u", 8)); a("s_barrier")
        stamp(a, 2)
        rd2(0); rd2(1)
        step1(30, lambda h: rd2(2 + h))
        step1(31, lambda h: rd2(4 + h))
        gate = lambda r: f"""v_add_f32_dpp v{r}, v{r}, v{r} quad_perm:[1,0,3,2] row_mask:0xf bank_mask:0xf
        v_add_f32_dpp v{r}, v{r}, v{r} quad_perm:[2,3,0,1] row_mask:0xf bank_mask:0xf
        v_add_f32_dpp v{r}, v{r}, v{r} row_half_mirror row_mask:0xf bank_mask:0xf
        v_add_f32_dpp v{r}, v{r}, v{r} row_mirror row_mask:0xf bank_mask:0xf
        v_mov_b32 v{r+1}, v{r}
        v_permlane16_swap_b32 v{r}, v{r+1}
        v_add_f32 v{r}, v{r}, v{r+1}
        v_mov_b32 v{r+1}, v{r}
        v_permlane32_swap_b32 v{r}, v{r+1}
        v_add_f32 v{r}, v{r}, v{r+1}
        v_cvt_pk_bf16_f32 v{r}, v{r}, v{r}
        v_and_b32 v{r}, 0xffff0000, v{r}
        v_mul_f32 v{r}, s{sNL}, v{r}
        v_exp_f32 v{r}, v{r}
        v_add_f32 v{r}, 1.0, v{r}
        v_rcp_f32 v{r}, v{r}
        v_cvt_pk_bf16_f32 v{r}, v{r}, v{r}
        v_and_b32 v{r}, 0xffff0000, v{r}
        v_sub_f32 v{r+1}, 1.0, v{r}
        v_cvt_pk_bf16_f32 v{r+1}, v{r+1}, v{r+1}
        v_and_b32 v{r+1}, 0xffff0000, v{r+1}""".split("\n")
        gate_st = [f"s_lshl_b32 s{sT0}, s{sGTOK}, 3\ns_add_u32 s{sT0}, s{sT0}, {WS_G:#x}\ns_mov_b64 exec, 1\n"
                   f"buffer_store_dwordx4 {vr(GR,4)}, off, {sr(sWS,4)}, s{sT0} sc1\ns_mov_b64 exec, -1"]
        E = 80
        if T == 1:
            KPK, VPK = 80, 64
            def sts(b0, b1, fl):
                return [f"buffer_store_dwordx4 {vr(KPK,4)}, v{vKS}, {sr(sWS,4)}, s{b0} offen{fl}",
                        f"buffer_store_dwordx4 {vr(KPK+4,4)}, v{vKS}, {sr(sWS,4)}, s{b1} offen{fl}",
                        f"buffer_store_dwordx4 {vr(VPK,4)}, v{vVS}, {sr(sWS,4)}, s{b0} offen offset:1024{fl}",
                        f"buffer_store_dwordx4 {vr(VPK+4,4)}, v{vVS}, {sr(sWS,4)}, s{b0} offen offset:1536{fl}"]
            lo_ = sts(sST, sT2, " sc1"); gl_ = []
            F = [f"s_add_u32 s{sT2}, s{sST}, 0x20000"]
            if not QS: F += [f"v_mul_f32 v{A0+i}, s{sQS}, v{A0+i}" for i in range(16)]
            F += [f"v_cvt_pk_bf16_f32 v{VPK+i}, v{A1+2*i}, v{A1+2*i+1}" for i in range(8)]
            F += lo_[2:]
            F += [f"v_cvt_pk_bf16_f32 v{KPK+i}, v{A0+2*i}, v{A0+2*i+1}" for i in range(8)]
            F += lo_[:2]
            F1 = F; F2 = interleave(gate(GR), gate(GR + 2)) + gate_st
        else:
            QPK, KPK = 80, 64
            F = [f"v_mul_f32 v{A0+i}, s{sQS}, v{A0+i}" for i in range(16)] if QS else []
            F += [f"v_cvt_pk_bf16_f32 v{QPK+i}, v{A0+2*i}, v{A0+2*i+1}" for i in range(8)]
            F += [f"s_lshr_b32 s{sT2}, s{sST}, 1\ns_add_u32 s{sT0}, s{sT2}, {WS_Q:#x}\ns_add_u32 s{sT1}, s{sT0}, 0x10000\n"
                  f"buffer_store_dwordx4 {vr(QPK,4)}, v{vL16}, {sr(sWS,4)}, s{sT0} offen sc1",
                  f"buffer_store_dwordx4 {vr(QPK+4,4)}, v{vL16}, {sr(sWS,4)}, s{sT1} offen sc1"]
            F += [f"v_cvt_pk_bf16_f32 v{KPK+i}, v{A1+2*i}, v{A1+2*i+1}" for i in range(8)]
            F += [f"v_mfma_f32_32x32x16_bf16 {vr(A0,16)}, {vr(WP,4)}, {vr(KPK,4)}, 0",
                  f"v_mfma_f32_32x32x16_bf16 {vr(A1,16)}, {vr(WP+4,4)}, {vr(KPK+4,4)}, 0"]
            OK_ = 128
            F1 = F
            F2 = interleave(phi_softmax(A0, 64, OK_, SCAL), phi_softmax(A1, 80, OK_ + 8, SCAL))
        fill = {s_: [] for s_ in range(32)}
        n1 = N1 if T else 3
        for i, ins in enumerate(F1): fill[1 + i * n1 // len(F1)].append(ins)
        lo = 1 + n1 + (0 if T else 2)
        for i, ins in enumerate(F2): fill[lo + i * (32 - lo) // len(F2)].append(ins)
        for s_ in range(32):
            SF = SA1 if T else SA0
            if s_ == 10 or s_ == SF:
                if s_ == 10:
                    vm.wait(("u", 9)); po.check(1)
                if s_ == SF:
                    stamp(a, 20); vm.wait("st")
                a("s_barrier")
                if s_ == SF:
                    lab = newlabel("lf")
                    a(f"""
                    s_cmp_lg_u32 s{sW}, 1
                    s_cbranch_scc1 {lab}
                    v_mov_b32 v{vU}, s{sFAST}
                    s_mov_b64 exec, 1
                    buffer_store_dword v{vU}, off, {sr(sWS,4)}, s{sFO}
                    s_mov_b64 exec, -1
                    {lab}:
                    """)
                    stamp(a, 21)
            lg.wait(("g", s_))
            mf(A2, wb2(s_), s_, T == 0, s_ == 0)
            rd2(s_ + 6)
            for ins in fill[s_]:
                a(ins)
                if "buffer_store" in ins: vm.issue("gst" if "exec" in ins else ("st" if "sc1" in ins else "stl"))
            if s_ == SB10:
                lg.all(); a("s_barrier")
            if s_ == 28 and T == 0: lf_issue()
        stamp(a, 3)
        init = p2_init()
        if T == 1:
            FQ, OQ = 128, 152
            for ins in init[:7]: a(ins)
            for i in range(8): a(f"v_cvt_pk_bf16_f32 v{FQ+i}, v{A2+2*i}, v{A2+2*i+1}")
            a(f"v_mfma_f32_32x32x16_bf16 {vr(A0,16)}, {vr(WP,4)}, {vr(FQ,4)}, 0")
            a(f"v_mfma_f32_32x32x16_bf16 {vr(A1,16)}, {vr(WP+4,4)}, {vr(FQ+4,4)}, 0")
            for ins in init[7:]: a(ins)
            lf_issue()
            qs = interleave(phi_softmax(A0, 136, OQ), phi_softmax(A1, 144, OQ + 8))
            for ins in qs[:CK1]: a(ins)
            start_kv()
            for ins in qs[CK1:]: a(ins)
        else:
            ID0, ID1, FV, VM0, VM1, t = vT + 8, vT + 12, 152, 160, 168, 180
            a(f"""
            v_mfma_f32_32x32x16_bf16 {vr(A0,16)}, {vr(OK_,4)}, {vr(ID0,4)}, 0
            v_mfma_f32_32x32x16_bf16 {vr(A1,16)}, {vr(OK_+8,4)}, {vr(ID0,4)}, 0
            v_mfma_f32_32x32x16_bf16 {vr(A0,16)}, {vr(OK_+4,4)}, {vr(ID1,4)}, {vr(A0,16)}
            v_mfma_f32_32x32x16_bf16 {vr(A1,16)}, {vr(OK_+12,4)}, {vr(ID1,4)}, {vr(A1,16)}
            """)
            start_kv()
            a(f"v_mov_b32 v{t}, 0x3f803f80")
            a(f"v_mov_b32 v{t+1}, 0x3f803f80")
            for i in range(8): a(f"v_mov_b64 {vr(VM0+2*i,2)}, {vr(t,2)}")
            a(f"s_mov_b64 exec, {sr(sVM,2)}")
            for i in range(8): a(f"v_cvt_pk_bf16_f32 v{VM0+i}, v{A2+2*i}, v{A2+2*i+1}")
            a(f"s_not_b64 exec, exec")
            for i in range(8): a(f"v_cvt_pk_bf16_f32 v{VM1+i}, v{A2+2*i}, v{A2+2*i+1}")
            a("s_mov_b64 exec, -1")
            for i in range(8): a(f"v_cvt_pk_bf16_f32 v{OK_+i}, v{A0+2*i}, v{A0+2*i+1}")
            for i in range(8): a(f"v_cvt_pk_bf16_f32 v{OK_+8+i}, v{A1+2*i}, v{A1+2*i+1}")
            a(f"""
            v_mfma_f32_32x32x16_bf16 {vr(A0,16)}, {vr(OK_,4)}, {vr(VM0,4)}, 0
            v_mfma_f32_32x32x16_bf16 {vr(A1,16)}, {vr(OK_+8,4)}, {vr(VM1,4)}, 0
            v_mfma_f32_32x32x16_bf16 {vr(A0,16)}, {vr(OK_+4,4)}, {vr(VM0+4,4)}, {vr(A0,16)}
            v_mfma_f32_32x32x16_bf16 {vr(A1,16)}, {vr(OK_+12,4)}, {vr(VM1+4,4)}, {vr(A1,16)}
            """)
            for ins in init: a(ins)
            for q in range(4): a(f"ds_write_b128 v{vKS}, {vr(A0+4*q,4)} offset:{q*1024}")
            for q in range(4): a(f"ds_write_b128 v{vVS}, {vr(A1+4*q,4)} offset:{16384+q*1024}")
            a("s_waitcnt lgkmcnt(0)")
        stamp(a, 23)
        vm.wait(("r", 1))
        a("s_barrier")
    y0 = p1(0)
    a("s_branch L_P2")
    a.label("L_T1")
    y1 = p1(1)

    a.label("L_P2")
    vm.reset(); lg.reset()
    stamp(a, 5)
    def rdK(t, buf):
        if t > 31: return
        a(f"ds_read_b128 {vr(KF[buf],4)}, v{vKA} offset:{t*2048}"); lg.issue(("k", t))
    def rdV(t, buf):
        if t > 31: return
        a(f"s_mov_b64 exec, {sr(sVM,2)}")
        a(f"ds_read_b128 {vr(VF[buf],4)}, v{vVA} offset:{t*2048+1024}")
        a(f"ds_read_b128 {vr(VF[buf]+4,4)}, v{vVA} offset:{t*2048+1536}")
        a("s_mov_b64 exec, -1")
        lg.issue(("v", t), 2)
    a(f"ds_read_b128 {vr(NM,4)}, v{vL16}"); lg.issue("k00")
    rdK(0, 0); rdK(1, 1); rdV(0, 0)
    lg.wait("k00")
    a(f"v_mfma_f32_32x32x16_bf16 {vr(S0,16)}, {vr(NM,4)}, {vr(QF[0],4)}, 0")
    a(f"v_mfma_f32_32x32x16_bf16 {vr(S1,16)}, {vr(NM,4)}, {vr(QF[1],4)}, 0")
    def max_tree(t, regs, init):
        rest = list(regs)
        if init:
            a(f"v_max3_f32 v{t}, v{rest[0]}, v{rest[1]}, v{rest[2]}"); rest = rest[3:]
        while len(rest) >= 2:
            a(f"v_max3_f32 v{t}, v{rest[0]}, v{rest[1]}, v{t}"); rest = rest[2:]
        if rest: a(f"v_max_f32 v{t}, v{rest[0]}, v{t}")
    def set_negm(t):
        a(f"v_mov_b32 v{t+1}, v{t}")
        a(f"v_permlane32_swap_b32 v{t}, v{t+1}")
        a(f"v_max_f32 v{t}, v{t}, v{t+1}")
        for i in range(16): a(f"v_sub_f32 v{NM+i}, 0, v{t}")
    def cond(cmp, f):
        lab = newlabel("cn")
        a(cmp); a(f"s_cbranch_scc1 {lab}"); f(); a.label(lab)
    role_a = lambda f: cond(f"s_cmp_lt_u32 s{sW}, 4", f)
    only_t0 = lambda f: cond(f"s_cmp_lg_u32 s{sT}, 0", f)
    if FAIR: role_a(lambda: a("s_setprio 1"))
    max_tree(vU, range(S0, S0 + 32), True)
    set_negm(vU)
    def qk(dst, buf, q):
        a(f"v_mfma_f32_32x32x16_bf16 {vr(dst,16)}, {vr(KF[buf],4)}, {vr(QF[q],4)}, {vr(NM,16)}")
    def sm(src, buf, half, o):
        a(f"v_smfmac_f32_32x32x32_bf16 {vr(o,16)}, {vr(VF[buf]+4*half,4)}, {vr(src+8*half,8)}, v{vIDX}")
    lg.wait(("k", 0))
    qk(S0, 0, 0)
    KP, PQ, AO = 192, 228, 236
    KVF = 192
    def t0_read():
        a(f"""
        s_lshr_b32 s{sT0}, s{sW}, 2
        s_lshl_b32 s{sT0}, s{sT0}, 16
        s_bfe_u32 s{sT1}, s{sW}, 0x10001
        s_lshl_b32 s{sT1}, s{sT1}, 14
        s_add_u32 s{sT0}, s{sT0}, s{sT1}
        s_and_b32 s{sT1}, s{sW}, 1
        s_lshl_b32 s{sT1}, s{sT1}, 11
        s_add_u32 s{sT0}, s{sT0}, s{sT1}
        s_add_u32 s{sT0}, s{sT0}, 32768
        v_add_u32 v{vU}, s{sT0}, v{vL16}
        """)
        for u in range(2):
            for t in range(4): a(f"ds_read_b128 {vr(KP+16*u+4*t,4)}, v{vU} offset:{u*1024+t*4096}")
    for r in range(NR0, 4): kv_round(r)
    only_t0(t0_read)
    def wo_dma(r):
        R = sWOA if r < 4 else sWOB
        a(f"s_mov_b32 m0, s{sPRIV}")
        for i in range(4):
            a(f"s_add_u32 s{sT0}, s{sWOS}, {(r%4)*32768 + i*(8192-1024)}")
            a(f"buffer_load_dwordx4 v{vPR}, {sr(R,4)}, s{sT0} offen offset:{i*1024} lds")
        vm.issue(("wo", r), 4)
    def wo_read(r):
        vm.wait(("wo", r))
        for st in range(2):
            for p_ in range(2):
                for wh in range(2):
                    a(f"ds_read_b64_tr_b16 {vr(WO+16*r+8*st+4*p_+2*wh,2)}, v{vWR+p_} offset:{st*2048+wh*1024}")
        lg.issue(("wor", r), 8)
    def kp_load(i):
        a(f"s_lshl_b32 s{sT0}, s{sQB}, 1")
        a(f"s_add_u32 s{sT0}, s{sT0}, {i}")
        a(f"s_and_b32 s{sT0}, s{sT0}, 15")
        a(f"s_lshl_b32 s{sT0}, s{sT0}, 12")
        a(f"s_add_u32 s{sT0}, s{sT0}, s{sKVP}")
        a(f"buffer_load_dwordx2 {vr(KP+2*i,2)}, v{vL16}, {sr(sWS,4)}, s{sT0} offen sc1")
        vm.issue("kp")
    P17, P18, PPOLL, P20 = 6, 14, 23, 38
    P21 = P20 + 2
    WD0 = [16, 19, 22, 25]; WD1 = [46, 49, 52, 55]; WL = 2
    def flavored(ins):
        l1, l2 = newlabel("fs"), newlabel("fj")
        a(f"s_cmp_lg_u32 s{sFAST}, 0"); a(f"s_cbranch_scc1 {l1}")
        a(ins + " sc1"); a(f"s_branch {l2}")
        a.label(l1); a(ins); a.label(l2)
    def put_flag(val):
        a(f"v_mov_b32 v{vU}, {val}")
        a("s_mov_b64 exec, 1")
        flavored(f"buffer_store_dword v{vU}, off, {sr(sWS,4)}, s{sFO}")
        a("s_mov_b64 exec, -1")
        vm.issue("flag")
    def flag_spin(vaddr, val):
        lo, ld = newlabel("sp"), newlabel("sd")
        a(f"s_mov_b32 s{sCNT}, 0")
        a.label(lo)
        a(f"v_cmp_gt_u32 vcc, {val}, v{vPOLL}")
        a(f"s_cbranch_vccz {ld}")
        a(f"buffer_load_dword v{vPOLL}, v{vaddr}, {sr(sWS,4)}, s{sFP} offen sc1")
        a(f"s_add_u32 s{sCNT}, s{sCNT}, 1")
        a(f"s_cmp_lt_u32 s{sCNT}, {SPIN_MAX}")
        a("s_waitcnt vmcnt(0)")
        a(f"s_cbranch_scc1 {lo}")
        a.label(ld)
    mark = [0]
    GV = 12
    def side(p):
        if p == 1:
            def f():
                a(f"""
                s_waitcnt lgkmcnt(0)
                s_lshl_b32 s{sT0}, s{sG1}, 2
                s_lshr_b32 s{sT1}, s{sW}, 1
                s_add_u32 s{sT0}, s{sT0}, s{sT1}
                s_lshl_b32 s{sT0}, s{sT0}, 16
                s_lshl_b32 s{sT1}, s{sTB}, 12
                s_add_u32 s{sT0}, s{sT0}, s{sT1}
                s_and_b32 s{sT1}, s{sW}, 1
                s_lshl_b32 s{sT1}, s{sT1}, 11
                s_add_u32 s{sT0}, s{sT0}, s{sT1}
                s_add_u32 s{sT0}, s{sT0}, {WS_KVP:#x}
                """)
                for u in range(2):
                    b = KP + 16 * u
                    for i in range(8): a(f"v_add_f32 v{b+i}, v{b+i}, v{b+8+i}")
                    for i in range(4): a(f"v_add_f32 v{b+i}, v{b+i}, v{b+4+i}")
                    a(f"buffer_store_dwordx4 {vr(b,4)}, v{vL16}, {sr(sWS,4)}, s{sT0} offen offset:{u*1024} sc1")
            only_t0(f)
            OQ = 152
            cond(f"s_cmp_eq_u32 s{sT}, 0", lambda: a(f"""
            s_add_u32 s{sT0}, s{sST}, {WS_PQ:#x}
            s_add_u32 s{sT1}, s{sT0}, 0x20000
            buffer_store_dwordx4 {vr(OQ,4)}, v{vL16}, {sr(sWS,4)}, s{sT0} offen sc1
            buffer_store_dwordx4 {vr(OQ+4,4)}, v{vL16}, {sr(sWS,4)}, s{sT0} offen offset:1024 sc1
            buffer_store_dwordx4 {vr(OQ+8,4)}, v{vL16}, {sr(sWS,4)}, s{sT1} offen sc1
            buffer_store_dwordx4 {vr(OQ+12,4)}, v{vL16}, {sr(sWS,4)}, s{sT1} offen offset:1024 sc1
            """))
            vm.issue("ast", 2)
        if p == P17 + 1:
            a(f"""
            s_lshl_b32 s{sT0}, s{sJ}, 14
            s_lshl_b32 s{sT1}, s{sA}, 12
            s_add_u32 s{sT0}, s{sT0}, s{sT1}
            v_lshlrev_b32 v{vU}, 6, v{vL}
            """)
            cond(f"s_cmp_ge_u32 s{sW}, 4", lambda: a(f"buffer_load_dword v{vPOLL}, v{vU}, {sr(sWOA,4)}, s{sT0} offen"))
            role_a(lambda: a(f"buffer_load_dword v{vPOLL}, v{vU}, {sr(sWOB,4)}, s{sT0} offen"))
            vm.issue("pf")
        if p == P17:
            vm.wait(("r", 3)); a("s_barrier")
            vm.issue("ast2")
        if P17 + 2 <= p < P17 + 6: kv_round(2 + p - P17)
        if p == P18:
            vm.wait("ast2"); a("s_barrier"); arrive(a, sG, 8, vU)
        if JIT and p % 8 == 4:
            k = p // 8
            def f():
                a(f"v_lshlrev_b32 v{vU}, 7, v{vL}")
                a(f"v_add_u32 v{vU}, L_JIT{k}-L_PC, v{vU}")
                a(f"v_min_u32 v{vU}, CODE_SPAN, v{vU}")
                a(f"s_mov_b64 exec, {'-1' if k == 6 else '0xffffff'}")
                a(f"global_load_dword v{vU+2}, v{vU}, s[26:27]")
                a("s_mov_b64 exec, -1")
            if k < 7: cond(f"s_cmp_lg_u32 s{sW}, {k+1}", f)
        if JIT and p % 8 == 0 and p >= 8: a.label(f"L_JIT{p//8-1}")
        if JIT and p == 40:
            cond(f"s_cmp_lg_u32 s{sW}, 7", lambda: a(f"buffer_load_dword v{vU+2}, off, {sr(sOUT,4)}, 0"))
        for half, WD in ((0, WD0), (1, WD1)):
            if p - WL in WD: wo_read(4 * half + WD.index(p - WL))
            if p in WD:
                r = 4 * half + WD.index(p)
                if r not in (0, 4): lg.wait(("wor", r - 1))
                wo_dma(r)
        if p == PPOLL:
            po.issue(sWS, sG, 8)
        b0 = PPOLL + 2
        if p == b0:
            po.check(32)
            vm.wait(("r", 7)); a("s_barrier")
        if b0 <= p < b0 + 8:
            for i in range(2): kp_load(2 * (p - b0) + i)
        if p == b0 + 8:
            a(f"""
            s_lshl_b32 s{sT0}, s{sHEAD}, 17
            s_lshl_b32 s{sT1}, s{sTILE}, 11
            s_add_u32 s{sT0}, s{sT0}, s{sT1}
            s_add_u32 s{sT0}, s{sT0}, {WS_PQ:#x}
            buffer_load_dwordx4 {vr(PQ,4)}, v{vL16}, {sr(sWS,4)}, s{sT0} offen sc1
            buffer_load_dwordx4 {vr(PQ+4,4)}, v{vL16}, {sr(sWS,4)}, s{sT0} offen offset:1024 sc1
            """)
            vm.issue("pq", 2)
        if p == P20 - 2:
            vm.wait("kp")
            n = 16
            while n >= 2:
                for i in range(n): a(f"v_add_f32 v{KP+i}, v{KP+i}, v{KP+n+i}")
                n //= 2
            a(f"v_cvt_pk_bf16_f32 v{KP+8}, v{KP}, v{KP+1}")
        if p == P20 - 1:
            lg.wait(("wor", 3))
            a(f"v_lshl_add_u32 v{vU}, v{vL}, 2, s{sPRIV}")
            a(f"ds_write_b32 v{vU}, v{KP+8}"); lg.issue("kx")
            a(f"v_lshlrev_b32 v{vU+1}, 2, v{vL}")
            a(f"v_add_u32 v{vU+1}, {SPARE}, v{vU+1}")
        if p == P20:
            lg.wait("kx"); a("s_barrier")
            for j in range(8): a(f"ds_read_b32 v{KVF+j}, v{vU+1} offset:{j*4096}")
            lg.issue("kvf", 8)
        if p == P20 + 1:
            lg.wait("kvf"); vm.wait("pq")
            a(f"v_mfma_f32_32x32x16_bf16 {vr(AO,16)}, {vr(KVF,4)}, {vr(PQ,4)}, 0")
            a(f"v_mfma_f32_32x32x16_bf16 {vr(AO,16)}, {vr(KVF+4,4)}, {vr(PQ+4,4)}, {vr(AO,16)}")
        if p == P20 + 2:
            a(f"v_add_f32 v{vU}, {f32(1e-6)}, v{AO+8}")
            a(f"v_rcp_f32 v{vU}, v{vU}")
            a(f"s_lshl_b32 s{sT0}, s{sTILE}, 16")
            for i in range(8): a(f"v_mul_f32 v{AO+i}, v{vU}, v{AO+i}")
            for i in range(4): a(f"v_cvt_pk_bf16_f32 v{AO+i}, v{AO+2*i}, v{AO+2*i+1}")
            a(f"""
            s_lshl_b32 s{sT1}, s{sHEAD}, 10
            s_add_u32 s{sT0}, s{sT0}, s{sT1}
            s_add_u32 s{sT0}, s{sT0}, {WS_O:#x}
            """)
            a(f"buffer_store_dwordx4 {vr(AO,4)}, v{vL16}, {sr(sWS,4)}, s{sT0} offen sc1")
            for i in range(4): a(f"v_mov_b32 v{AO+4+i}, -1")
            a(f"s_add_u32 s{sST}, s{sT0}, 0x8000")
            a(f"buffer_store_dwordx4 {vr(AO+4,4)}, v{vL16}, {sr(sWS,4)}, s{sST} offen sc1")
            vm.issue("oa", 2)
        if p == P21 + 5:
            vm.wait("oa"); a("s_barrier"); arrive(a, sQB, 16, vU)
        if p == 57:
            def f():
                a(f"v_mov_b32 v{vU+1}, s{sG}")
                a(f"v_writelane_b32 v{vU+1}, s{sQB}, 1")
                a(f"v_lshlrev_b32 v{vU+1}, 8, v{vU+1}")
                a(f"s_mov_b32 s{sFP}, {WS_CNT + 16*256:#x}")
                a(f"buffer_load_dword v{vPOLL}, v{vU+1}, {sr(sWS,4)}, s{sFP} offen sc1")
            cond(f"s_cmp_lg_u32 s{sW}, 0", f)
            mark[0] = vm.total
        if p == 60:
            def f():
                a(f"s_waitcnt vmcnt({vm.total - mark[0]})")
                flag_spin(vU + 1, 32)
            cond(f"s_cmp_lg_u32 s{sW}, 0", f)
            a("s_barrier")
            a(f"v_and_b32 v{vU+1}, 31, v{vL}")
            a(f"v_lshlrev_b32 v{vU+1}, 2, v{vU+1}")
            a(f"""
            v_lshlrev_b32 v{vU+1}, 1, v{vU+1}
            s_lshl_b32 s{sT0}, s{sT3T}, 8
            s_add_u32 s{sT0}, s{sT0}, {WS_G:#x}
            s_lshl_b32 s{sT1}, s{sTILE}, 8
            s_add_u32 s{sT1}, s{sT1}, {WS_G:#x}
            buffer_load_dword v{GV}, v{vU+1}, {sr(sWS,4)}, s{sT0} offen sc1
            buffer_load_dword v{GV+1}, v{vU+1}, {sr(sWS,4)}, s{sT1} offen offset:4 sc1
            s_lshl_b32 s{sKVP}, s{sT3T}, 16
            s_lshl_b32 s{sT0}, s{sA}, 13
            s_add_u32 s{sKVP}, s{sKVP}, s{sT0}
            s_add_u32 s{sKVP}, s{sKVP}, {WS_O:#x}
            s_add_u32 s{sXB}, s{sKVP}, 4096
            """)
            vm.issue("g", 2)
        if FAIR:
            if p % 4 == FAIR % 4 and FAIR < 4: role_a(lambda: a("s_setprio 0"))
            if p % 4 == 0 and p: role_a(lambda: a("s_setprio 1"))
    a.raw(".p2align 3")
    for p in range(64):
        kt, cur = p >> 1, p & 1
        kb = kt & 1
        Sc = S1 if cur else S0
        for i in range(16):
            if cur == 0:
                if i == 2:
                    if p > 0: sm(S1, kb ^ 1, 1, O1)
                    rdV(kt + 1, kb ^ 1)
                if i == 4:
                    qk(S1, kb, 1)
                    rdK(kt + 2, kb)
                if i == 10:
                    lg.wait(("v", kt)); sm(S0, kb, 0, O0)
            else:
                if i == 2: sm(S0, kb, 1, O0)
                if i == 4 and kt < 31:
                    lg.wait(("k", kt + 1)); qk(S0, kb ^ 1, 0)
                if i == 10: sm(S1, kb, 0, O1)
            if i == 7: side(p)
            if i == 12 and p in LSTAMP: stamp(a, 6 + LSTAMP.index(p))
            a(f"v_exp_f32 v{Sc+i}, v{Sc+i}")
    a(f"v_add_u32 v{vU}, s{sPRIV}, v{vL16}")
    a(f"v_xor_b32 v{vU+1}, 16384, v{vU}")
    sm(S1, 1, 1, O1)
    stamp(a, 16)
    lg.wait(("wor", 7))
    a(f"ds_write_b128 v{vU}, {vr(O1,4)}")
    a(f"ds_write_b128 v{vU}, {vr(O1+4,4)} offset:1024")
    a(f"ds_write_b32 v{vU}, v{O1+8} offset:2048")
    lg.all()
    a("s_barrier")
    a(f"ds_read_b32 v{O1+8}, v{vU+1} offset:2048")
    a(f"ds_read_b128 {vr(O1,4)}, v{vU+1}")
    a(f"ds_read_b128 {vr(O1+4,4)}, v{vU+1} offset:1024")
    a(f"""
    v_mov_b32 v{vU}, {f32(2.0**40)}
    v_mov_b32 v{vU+1}, {f32(2.0**-80)}
    v_mov_b32 v{vU+2}, 0x207
    s_waitcnt lgkmcnt(2)
    v_add_f32 v{O0+8}, v{O0+8}, v{O1+8}
    v_cmp_nle_f32 s[96:97], v{O0+8}, v{vU}
    v_cmp_nge_f32 vcc, v{O0+8}, v{vU+1}
    s_waitcnt lgkmcnt(0)
    """)
    for i in range(4): a(f"v_pk_add_f32 {vr(O0+2*i,2)}, {vr(O0+2*i,2)}, {vr(O1+2*i,2)}")
    a(f"""
    s_or_b64 s[96:97], s[96:97], vcc
    v_pk_add_f32 {vr(O1,2)}, {vr(O0,2)}, {vr(O0+2,2)}
    v_pk_add_f32 {vr(O1+2,2)}, {vr(O0+4,2)}, {vr(O0+6,2)}
    v_pk_add_f32 {vr(O1,2)}, {vr(O1,2)}, {vr(O1+2,2)}
    v_add_f32 v{O1}, v{O1}, v{O1+1}
    v_cmp_class_f32 vcc, v{O1}, v{vU+2}
    s_or_b64 vcc, s[96:97], vcc
    s_cbranch_vccnz L_FALLBACK
    """)
    a.label("L_FIN")
    a(f"v_rcp_f32 v{vU+1}, v{O0+8}")
    vm.wait("g")
    a(f"v_mul_f32 v{vU+1}, v{vU+1}, v{GV+1}")
    for i in range(4): a(f"v_pk_mul_f32 {vr(O0+2*i,2)}, {vr(O0+2*i,2)}, {vr(vU+1,2)} op_sel_hi:[1,0]")
    for i in range(4): a(f"v_cvt_pk_bf16_f32 v{QF[0]+i}, v{O0+2*i}, v{O0+2*i+1}")
    for i in range(4): a(f"v_min_u32 v{QF[0]+i}, -2, v{QF[0]+i}")
    a(f"buffer_store_dwordx4 {vr(QF[0],4)}, v{vL16}, {sr(sWS,4)}, s{sST} offen sc1")
    vm.issue("ob")
    stamp(a, 17)
    for i in range(8):
        a(f"buffer_load_dwordx4 {vr(S0+4*i,4)}, v{vL16}, {sr(sWS,4)}, s{sKVP if i < 4 else sXB} offen offset:{(i%4)*1024} sc1")
        vm.issue(("oa", i))
    CA = [NM, 96]
    def ob_load(i):
        a(f"buffer_load_dwordx4 {vr(O0+4*i,4)}, v{vL16}, {sr(sWS,4)}, s{sT0 if i < 4 else sT1} offen offset:{(i%4)*1024} sc1")
    a(f"s_add_u32 s{sT0}, s{sKVP}, 0x8000")
    a(f"s_add_u32 s{sT1}, s{sKVP}, 0x9000")
    a("s_barrier")
    a(f"""
    v_and_b32 v{vU}, 31, v{vL}
    s_lshr_b32 s{sT2}, s{sW}, 2
    s_lshl_b32 s{sT2}, s{sT2}, 5
    s_lshl_b32 s{sT3}, s{sA}, 6
    s_add_u32 s{sT2}, s{sT2}, s{sT3}
    v_add_u32 v{vU}, s{sT2}, v{vU}
    v_mul_u32_u24 v{vU}, 272, v{vU}
    v_lshrrev_b32 v{vU+1}, 5, v{vL}
    v_lshl_add_u32 v{vU}, v{vU+1}, 4, v{vU}
    v_lshrrev_b32 v{vU+1}, 3, v0
    v_mul_u32_u24 v{vU+2}, 272, v{vU+1}
    v_and_b32 v{vKA}, 7, v0
    v_lshl_add_u32 v{vU+2}, v{vKA}, 5, v{vU+2}
    v_lshlrev_b32 v{vU+1}, 10, v{vU+1}
    v_lshl_add_u32 v{vU+1}, v{vKA}, 4, v{vU+1}
    s_lshr_b32 s{sT2}, s{sT3T}, 1
    s_lshl_b32 s{sT2}, s{sT2}, 16
    s_lshl_b32 s{sT3}, s{sCB}, 7
    s_add_u32 s{sT2}, s{sT2}, s{sT3}
    """)
    for st in range(8):
        vm.wait(("oa", st))
        for p_ in range(2):
            c = "0" if st == 0 else vr(CA[p_], 16)
            a(f"v_mfma_f32_32x32x16_bf16 {vr(CA[p_],16)}, {vr(WO+8*st+4*p_,4)}, {vr(S0+4*st,4)}, {c}")
        ob_load(st); vm.issue("obl")
    for p_ in range(2):
        for i in range(8): a(f"v_pk_mul_f32 {vr(CA[p_]+2*i,2)}, {vr(CA[p_]+2*i,2)}, {vr(GV,2)} op_sel_hi:[1,0]")
    a(f"s_mov_b32 s{sCNT}, 0")
    a(f"s_mov_b32 s{sFP}, 0")
    a.label("L_OBW")
    a("s_waitcnt vmcnt(0)")
    for st in range(8):
        b = O0 + 4 * st
        a(f"s_bitcmp1_b32 s{sFP}, {st}")
        a(f"s_cbranch_scc1 L_OBN{st}")
        a(f"v_max3_u32 v{vKA}, v{b}, v{b+1}, v{b+2}")
        a(f"v_max_u32 v{vKA}, v{b+3}, v{vKA}")
        a(f"v_cmp_eq_u32 vcc, -1, v{vKA}")
        a(f"s_cbranch_vccz L_OBY{st}")
        if ORD:
            for k in range(st, 8): ob_load(k)
            a("s_branch L_OBN7")
        else:
            ob_load(st)
            a(f"s_branch L_OBN{st}")
        a.label(f"L_OBY{st}")
        for p_ in range(2):
            a(f"v_mfma_f32_32x32x16_bf16 {vr(CA[p_],16)}, {vr(WO+64+8*st+4*p_,4)}, {vr(b,4)}, {vr(CA[p_],16)}")
        a(f"s_bitset1_b32 s{sFP}, {st}")
        a.label(f"L_OBN{st}")
    a(f"s_add_u32 s{sCNT}, s{sCNT}, 1")
    a(f"s_cmp_ge_u32 s{sCNT}, {SPIN_MAX}")
    a("s_cbranch_scc1 L_OBD")
    a(f"s_cmp_lg_u32 s{sFP}, 0xff")
    a("s_cbranch_scc1 L_OBW")
    a.label("L_OBD")
    stamp(a, 18)
    a("s_nop 6")
    for p_ in range(2):
        for q in range(4):
            a(f"ds_write_b128 v{vU}, {vr(CA[p_]+4*q,4)} offset:{p_*128 + q*32}")
    a("s_waitcnt lgkmcnt(0)")
    a("s_barrier")
    R = S0
    for k in range(4):
        a(f"ds_read_b128 {vr(R+8*k,4)}, v{vU+2} offset:{k*64*272}")
        a(f"ds_read_b128 {vr(R+8*k+4,4)}, v{vU+2} offset:{k*64*272+16}")
    a("s_waitcnt lgkmcnt(4)")
    for i in range(4): a(f"v_pk_add_f32 {vr(R+2*i,2)}, {vr(R+2*i,2)}, {vr(R+8+2*i,2)}")
    a("s_waitcnt lgkmcnt(0)")
    for i in range(4): a(f"v_pk_add_f32 {vr(R+16+2*i,2)}, {vr(R+16+2*i,2)}, {vr(R+24+2*i,2)}")
    for i in range(4): a(f"v_pk_add_f32 {vr(R+2*i,2)}, {vr(R+2*i,2)}, {vr(R+16+2*i,2)}")
    for i in range(4): a(f"v_cvt_pk_bf16_f32 v{R+i}, v{R+2*i}, v{R+2*i+1}")
    a(f"buffer_store_dwordx4 {vr(R,4)}, v{vU+1}, {sr(sOUT,4)}, s{sT2} offen sc1")
    if INSTR:
        a("s_waitcnt vmcnt(0)")
        stamp(a, 19)
        a(f"""
        s_mov_b32 s{sWS+2}, 0x4000000
        s_lshl_b32 s{sT0}, s2, 3
        s_add_u32 s{sT0}, s{sT0}, s{sW}
        s_lshl_b32 s{sT0}, s{sT0}, 8
        s_add_u32 s{sT0}, s{sT0}, {WS_DBG:#x}
        v_lshlrev_b32 v{vU}, 2, v{vL}
        buffer_store_dword v{vST}, v{vU}, {sr(sWS,4)}, s{sT0} offen
        """)
    a.label("L_END")
    a("s_endpgm")
    a.label("L_FALLBACK")
    a(f"""
    v_mov_b32 v{vKA}, v{vL16}
    v_and_b32 v{vVA}, 0xffff, v{vVA}
    v_mov_b32 v{vU}, 0xff800000
    s_mov_b32 s{sCNT}, 0
    """)
    a.label("L_FB_MAX")
    a(f"ds_read_b128 {vr(KF[0],4)}, v{vKA}")
    a("s_waitcnt lgkmcnt(0)")
    a(f"v_mfma_f32_32x32x16_bf16 {vr(O1,16)}, {vr(KF[0],4)}, {vr(QF[0],4)}, 0")
    max_tree(vU, range(O1, O1 + 16), False)
    a(f"""
    v_add_u32 v{vKA}, 2048, v{vKA}
    s_add_u32 s{sCNT}, s{sCNT}, 1
    s_cmp_lt_u32 s{sCNT}, 64
    s_cbranch_scc1 L_FB_MAX
    v_mov_b32 v{vKA}, v{vL16}
    s_mov_b32 s{sCNT}, 0
    """)
    set_negm(vU)
    for i in range(16): a(f"v_mov_b32 v{O0+i}, 0")
    a.label("L_FB_LOOP")
    rdK(0, 0); rdV(0, 0)
    a("s_waitcnt lgkmcnt(0)")
    qk(O1, 0, 0)
    for i in range(16): a(f"v_exp_f32 v{O1+i}, v{O1+i}")
    sm(O1, 0, 0, O0); sm(O1, 0, 1, O0)
    a(f"""
    v_add_u32 v{vKA}, 2048, v{vKA}
    v_add_u32 v{vVA}, 2048, v{vVA}
    s_add_u32 s{sCNT}, s{sCNT}, 1
    s_cmp_lt_u32 s{sCNT}, 64
    s_cbranch_scc1 L_FB_LOOP
    s_branch L_FIN
    """)

def build(path, verbose=False):
    a = Asm()
    gen(a)
    a.finalize(verbose)
    hdr = open(f"cdna_kernels/{NAME}.s.ref").read().split("; @launch")[0]
    hdr += "; @launch grid=(256,1,1) block=(512,1,1) lds=163840\n"
    out = hdr + '.amdgcn_target "amdgcn-amd-amdhsa--gfx950"\n.text\n' + a.text()
    out += "CODE_END:\n.set CODE_SPAN, CODE_END - L_PC - 4\n"
    out += f""".section .rodata,"a"
.p2align 6
.amdhsa_kernel {NAME}_kernel
  .amdhsa_next_free_vgpr 256
  .amdhsa_next_free_sgpr 102
  .amdhsa_accum_offset 256
  .amdhsa_group_segment_fixed_size 0
  .amdhsa_kernarg_size 88
  .amdhsa_user_sgpr_count 2
  .amdhsa_user_sgpr_kernarg_segment_ptr 1
  .amdhsa_system_sgpr_workgroup_id_x 1
.end_amdhsa_kernel
"""
    open(path, "w").write(out)

if __name__ == "__main__":
    build(sys.argv[1], verbose="-v" in sys.argv)
```

```python
import sys, struct
from asmlib import Asm

NAME = "gated_mix__linear_kernel_hedgehog__mha_block__prompt"
LITE = "-l" in sys.argv
INSTR = "-i" in sys.argv or LITE
def f32(x): return "0x%08x" % struct.unpack("<I", struct.pack("<f", x))[0]
LOG2E = 1.4426950408889634
WS_KV, WS_Q, WS_PQ, WS_KVP, WS_O, WS_G, WS_CNT, WS_END = 0x0, 0x400000, 0x600000, 0xA00000, 0xE00000, 0x1200000, 0x1210000, 0x1220000
WS_FLG = WS_CNT + 0x8000
WS_F2, WS_F3 = WS_FLG + 0x2000, WS_FLG + 0x4000
WS_DBG = 0x2000000
SPIN_MAX = 400000
def opt(name, default):
    for x in sys.argv:
        if x.startswith(name + "="): return int(x.split("=")[1])
    return default
PD = opt("pd", 3)
FAIR = opt("fair", 3)
NOMF, NORD, NODMA = opt("nomf", 0), opt("nord", 0), opt("nodma", 0)
MAP, LA, SPREAD = opt("map", 0), opt("la", 1), opt("spread", 1)
SB10 = opt("sb10", 26)
NR0 = opt("nr0", 2)
TMO = opt("tmo", 24)
JIT = opt("jit", 0)
SCAL = opt("scal", 0)
TLB = opt("tlb", 0)
QS = opt("qs", 1)
NOPF = opt("nopf", 1)
PWU = opt("pwu", 99)
WLATE, WT0, KPM = opt("wlate", 1), opt("wt0", 1), opt("kpm", 1)
NOWO, NOA = opt("nowo", 0), opt("noa", 0)
ORD = opt("ord", 1)
OBAT, OBSL = opt("obat", 4), opt("obsl", 2)
N1 = opt("n1", 4)
SA0, SA1 = opt("sa0", 16), opt("sa1", 20)
FASTOK = opt("fast", 1)
CK1 = opt("ck1", 42)
LSTAMP = [0, 5, 12, 19, 26, 32, 39, 47, 55, 60]
def vr(a, n=1): return f"v{a}" if n == 1 else f"v[{a}:{a+n-1}]"
def sr(a, n=1): return f"s{a}" if n == 1 else f"s[{a}:{a+n-1}]"

class Cnt:
    def __init__(self, a, name, mx):
        self.a, self.name, self.mx, self.q, self.total = a, name, mx, [], 0
    def issue(self, tag, n=1): self.q += [tag] * n; self.total += n
    def wait(self, *tags):
        idx = max((i for i, t in enumerate(self.q) if t in tags), default=-1)
        if idx < 0: return
        n = len(self.q) - 1 - idx
        self.a(f"s_waitcnt {self.name}({min(n, self.mx)})")
        self.q = self.q[idx + 1:] if n <= self.mx else self.q[len(self.q) - self.mx:]
    def all(self):
        self.a(f"s_waitcnt {self.name}(0)"); self.q = []
    def reset(self): self.q = []
    def wait_mark(self, m):
        n = self.total - m
        if n < len(self.q) or True:
            self.a(f"s_waitcnt {self.name}({min(n, self.mx)})")
            self.q = self.q[len(self.q) - min(n, len(self.q), self.mx):] if n else []

sX, sWB, sWA, sWS, sPH, sGT, sDB, sWOA, sWOB, sOUT = 28, 32, 36, 40, 44, 48, 52, 56, 60, 64
sS1 = 12
sW, sG, sJ, sROT = 68, 69, 70, 71
sT0, sT1, sT2, sT3 = 72, 73, 74, 75
sXB, sC0, sM0X, sM0W = 76, 77, 78, 79
sL, sNL, sQS, sVM = 80, 82, 84, 0
sT, sKVL = 83, 85
sHEAD, sQB, sTILE, sCNT = 88, 89, 90, 91
sPRIV, sWOS, sKVP, sA = 92, 93, 94, 95
sGTOK, sST = 100, 101
sD0, sD1, sPO = 12, 13, 86
sCB, sT3T, sFAST, sFO, sFP, sXO = 4, 5, 6, 7, 8, 9
sG1, sTB = 3, 87
vL, vL16 = 1, 2
vST = 15
vKA, vVA, vIDX, vPR, vWR = 3, 4, 5, 6, 7
vU = 9
vXD0, vXD1, vWD = 9, 10, 11
vKS, vVS = 12, 13
vT = 64
vXA, vWA = 80, 92
A2, A0, A1 = 16, 32, 48
WBUF, WP, XF = 96, 120, 128
NM, S0, S1, O0, O1 = 16, 32, 48, 64, 80
KF = [96, 100]; VF = [104, 112]; QF = [120, 124]
WO = 128
SLOT = 32768
SPARE = 131072

def srd(a, d, base, nbytes):
    a(f"s_mov_b32 s{d}, s{base}")
    a(f"s_mov_b32 s{d+1}, s{base+1}")
    a(f"s_mov_b32 s{d+2}, {nbytes:#x}")
    a(f"s_mov_b32 s{d+3}, 0x20000")

KEEP = [int(x) for y in sys.argv if y.startswith("keep=") for x in y[5:].split(",")]
def stamp(a, i):
    if not INSTR or (LITE and i not in (0, 19)) or (KEEP and i not in KEEP + [0, 19]): return
    a("s_memtime s[96:97]")
    a("s_memrealtime s[98:99]")
    a("s_waitcnt lgkmcnt(0)")
    a(f"v_writelane_b32 v{vST}, s96, {2*i}")
    a(f"v_writelane_b32 v{vST}, s98, {2*i+1}")

def interleave(*lists):
    out = []
    n = max(len(l) for l in lists)
    for i in range(n):
        for l in lists:
            if i < len(l): out.append(l[i])
    return out

def phi_softmax(P, T, O, scal=0):
    L = _phi(P, T, O)
    if not scal: return L
    R = []
    import re
    for x in L:
        if not x.startswith('v_pk_'): R.append(x); continue
        n = [int(v) for v in re.findall(r'v\[(\d+):', x)]
        hi = 1 if 'op_sel:' in x else 0
        for k in range(2):
            if 'fma' in x: R.append(f'v_fma_f32 v{n[0]+k}, v{n[1]+k}, s{sL}, v{n[2]+hi}')
            elif 'mul' in x: R.append(f'v_mul_f32 v{n[0]+k}, v{n[1]+k}, v{n[2]+hi}')
            else: R.append(f'v_add_f32 v{n[0]+k}, v{n[1]+k}, v{n[2]+k}')
    return R
def _phi(P, T, O):
    L = []
    L.append(f"v_max3_f32 v{T}, v{P}, v{P+1}, v{P+2}")
    L.append(f"v_max3_f32 v{T+1}, v{P+8}, v{P+9}, v{P+10}")
    L.append(f"v_max3_f32 v{T+2}, v{P+3}, v{P+4}, v{P+5}")
    L.append(f"v_max3_f32 v{T+3}, v{P+11}, v{P+12}, v{P+13}")
    L.append(f"v_max3_f32 v{T}, v{P+6}, v{P+7}, v{T}")
    L.append(f"v_max3_f32 v{T+1}, v{P+14}, v{P+15}, v{T+1}")
    L.append(f"v_max_f32 v{T}, v{T}, v{T+2}")
    L.append(f"v_max_f32 v{T+1}, v{T+1}, v{T+3}")
    L.append(f"v_permlane32_swap_b32 v{T}, v{T+1}")
    L.append(f"v_max_f32 v{T}, v{T}, v{T+1}")
    L.append(f"v_mul_f32 v{T}, s{sNL}, v{T}")
    L.append(f"v_mov_b32 v{T+1}, v{T}")
    L.append(f"v_permlane32_swap_b32 v{T}, v{T+1}")
    for i in range(4):
        L.append(f"v_pk_fma_f32 {vr(P+2*i,2)}, {vr(P+2*i,2)}, {sr(sL,2)}, {vr(T,2)} op_sel_hi:[1,0,0]")
    for i in range(4, 8):
        L.append(f"v_pk_fma_f32 {vr(P+2*i,2)}, {vr(P+2*i,2)}, {sr(sL,2)}, {vr(T,2)} op_sel:[0,0,1] op_sel_hi:[1,0,1]")
    for i in range(16):
        L.append(f"v_exp_f32 v{P+i}, v{P+i}")
    L.append(f"v_pk_add_f32 {vr(T,2)}, {vr(P,2)}, {vr(P+2,2)}")
    L.append(f"v_pk_add_f32 {vr(T+2,2)}, {vr(P+4,2)}, {vr(P+6,2)}")
    L.append(f"v_pk_add_f32 {vr(T+4,2)}, {vr(P+8,2)}, {vr(P+10,2)}")
    L.append(f"v_pk_add_f32 {vr(T+6,2)}, {vr(P+12,2)}, {vr(P+14,2)}")
    L.append(f"v_pk_add_f32 {vr(T,2)}, {vr(T,2)}, {vr(T+2,2)}")
    L.append(f"v_pk_add_f32 {vr(T+4,2)}, {vr(T+4,2)}, {vr(T+6,2)}")
    L.append(f"v_add_f32 v{T}, v{T}, v{T+1}")
    L.append(f"v_add_f32 v{T+1}, v{T+4}, v{T+5}")
    L.append(f"v_permlane32_swap_b32 v{T}, v{T+1}")
    L.append(f"v_add_f32 v{T}, v{T}, v{T+1}")
    L.append(f"v_rcp_f32 v{T}, v{T}")
    L.append(f"v_mov_b32 v{T+1}, v{T}")
    L.append(f"v_permlane32_swap_b32 v{T}, v{T+1}")
    for i in range(4):
        L.append(f"v_pk_mul_f32 {vr(P+2*i,2)}, {vr(P+2*i,2)}, {vr(T,2)} op_sel_hi:[1,0]")
    for i in range(4, 8):
        L.append(f"v_pk_mul_f32 {vr(P+2*i,2)}, {vr(P+2*i,2)}, {vr(T,2)} op_sel:[0,1] op_sel_hi:[1,1]")
    for i in range(8):
        L.append(f"v_cvt_pk_bf16_f32 v{O+i}, v{P+2*i}, v{P+2*i+1}")
    return L

_lab = [0]
def newlabel(p):
    _lab[0] += 1
    return f"L{p}{_lab[0]}"

def spin_check(a, vreg, srdreg, soff, target):
    lo, ld = newlabel("sp"), newlabel("sd")
    a(f"s_mov_b32 s{sCNT}, 0")
    a.label(lo)
    a(f"v_readfirstlane_b32 s{sT3}, v{vreg}")
    a(f"s_cmp_ge_u32 s{sT3}, {target}")
    a(f"s_cbranch_scc1 {ld}")
    a(f"buffer_load_dword v{vreg}, off, {sr(srdreg,4)}, {soff} sc1")
    a(f"s_add_u32 s{sCNT}, s{sCNT}, 1")
    a(f"s_cmp_lt_u32 s{sCNT}, {SPIN_MAX}")
    a("s_waitcnt vmcnt(0)")
    a(f"s_cbranch_scc1 {lo}")
    a.label(ld)

class Poll:
    def __init__(self, a, vm, vreg): self.a, self.vm, self.v = a, vm, vreg
    def issue(self, srdreg, sreg, base):
        a = self.a; lab = newlabel("pi")
        a(f"s_cmp_lg_u32 s{sW}, 0"); a(f"s_cbranch_scc1 {lab}")
        if sreg is None: self.off = "0"
        else:
            a(f"s_lshl_b32 s{sPO}, s{sreg}, 8"); a(f"s_add_u32 s{sPO}, s{sPO}, {WS_CNT + base*256:#x}"); self.off = f"s{sPO}"
        a(f"buffer_load_dword v{self.v}, off, {sr(srdreg,4)}, {self.off} sc1")
        a.label(lab)
        self.srd, self.mark = srdreg, self.vm.total
    def check(self, target):
        a = self.a; lab = newlabel("pc")
        a(f"s_cmp_lg_u32 s{sW}, 0"); a(f"s_cbranch_scc1 {lab}")
        a(f"s_waitcnt vmcnt({min(63, self.vm.total - self.mark)})")
        spin_check(a, self.v, self.srd, self.off, target)
        a.label(lab)

def arrive(a, cnt_sreg, base_idx, vtmp):
    lab = newlabel("ar")
    a(f"s_cmp_lg_u32 s{sW}, 0")
    a(f"s_cbranch_scc1 {lab}")
    a(f"s_lshl_b32 s{sT3}, s{cnt_sreg}, 8")
    a(f"s_add_u32 s{sT3}, s{sT3}, {WS_CNT + base_idx*256:#x}")
    a(f"v_mov_b32 v{vtmp}, 1")
    a("s_mov_b64 exec, 1")
    a(f"buffer_atomic_add v{vtmp}, off, {sr(sWS,4)}, s{sT3} sc1")
    a("s_mov_b64 exec, -1")
    a.label(lab)

def gen(a):
    kname = NAME + "_kernel"
    a.raw(f".globl {kname}\n.p2align 8\n.type {kname},@function")
    a.label(kname)
    vm = Cnt(a, "vmcnt", 63); lg = Cnt(a, "lgkmcnt", 15)
    vPOLL = vU + 5
    po = Poll(a, vm, vPOLL)
    a(f"""
    s_cmp_ge_u32 s2, 256
    s_cbranch_scc1 L_END
    s_load_dwordx8 s[4:11], s[0:1], 0
    s_load_dwordx8 s[12:19], s[0:1], 32
    s_load_dwordx4 s[20:23], s[0:1], 64
    s_load_dwordx2 s[24:25], s[0:1], 80
    s_getpc_b64 s[26:27]
    """)
    a.label("L_PC")
    a(f"""
    v_lshrrev_b32 v{vT}, 6, v0
    v_and_b32 v{vL}, 63, v0
    s_and_b32 s{sG}, s2, 7
    v_readfirstlane_b32 s{sW}, v{vT}
    s_lshr_b32 s{sJ}, s2, 3
    """)
    if MAP == 0:
        a(f"""
        s_and_b32 s{sT}, s{sJ}, 1
        s_lshr_b32 s{sTB}, s2, 4
        s_mov_b32 s{sG1}, s{sG}
        s_lshl_b32 s{sT0}, s{sT}, 2
        s_add_u32 s{sROT}, s{sTB}, s{sG}
        s_add_u32 s{sROT}, s{sROT}, s{sT0}
        """)
    elif MAP == 2:
        a(f"""
        s_bfe_u32 s{sT}, s{sJ}, 0x10001
        s_and_b32 s{sT0}, s{sJ}, 1
        s_lshl_b32 s{sTB}, s{sG}, 1
        s_add_u32 s{sTB}, s{sTB}, s{sT0}
        s_lshr_b32 s{sG1}, s{sJ}, 2
        s_lshl_b32 s{sT0}, s{sT0}, 2
        s_add_u32 s{sROT}, s{sG1}, s{sG}
        s_add_u32 s{sROT}, s{sROT}, s{sT0}
        """)
    elif MAP == 84:
        a(f"""
        s_and_b32 s{sT0}, s{sJ}, 3
        s_and_b32 s{sT}, s{sJ}, 1
        s_lshr_b32 s{sT1}, s{sJ}, 2             ; 0..7
        s_and_b32 s{sTB}, s{sG}, 1
        s_lshl_b32 s{sTB}, s{sTB}, 3
        s_add_u32 s{sTB}, s{sTB}, s{sT1}
        s_and_b32 s{sG1}, s{sG}, 6
        s_lshr_b32 s{sT2}, s{sT0}, 1
        s_add_u32 s{sG1}, s{sG1}, s{sT2}
        s_lshl_b32 s{sROT}, s{sT0}, 1
        s_add_u32 s{sROT}, s{sROT}, s{sT1}
        s_lshr_b32 s{sT2}, s{sG}, 1
        s_add_u32 s{sROT}, s{sROT}, s{sT2}
        """)
    elif MAP == 48:
        a(f"""
        s_and_b32 s{sT0}, s{sJ}, 7              ; c
        s_and_b32 s{sT}, s{sJ}, 1
        s_lshr_b32 s{sT1}, s{sJ}, 3             ; 0..3
        s_and_b32 s{sTB}, s{sG}, 3
        s_lshl_b32 s{sTB}, s{sTB}, 2
        s_add_u32 s{sTB}, s{sTB}, s{sT1}
        s_and_b32 s{sG1}, s{sG}, 4
        s_lshr_b32 s{sT2}, s{sT0}, 1
        s_add_u32 s{sG1}, s{sG1}, s{sT2}
        s_lshl_b32 s{sROT}, s{sT1}, 1
        s_add_u32 s{sROT}, s{sROT}, s{sT0}
        s_add_u32 s{sROT}, s{sROT}, s{sG}
        """)
    a(f"""
    v_lshrrev_b32 v{vT}, 3, v{vL}
    v_and_b32 v{vT+1}, 7, v{vL}
    v_lshrrev_b32 v{vT+2}, 4, v{vL}
    v_xor_b32 v{vT+3}, v{vT+1}, v{vT+2}
    v_lshlrev_b32 v{vT+3}, 4, v{vT+3}
    v_lshl_add_u32 v{vXD0}, v{vT}, 10, v{vT+3}
    v_xor_b32 v{vXD1}, 64, v{vXD0}
    v_add_u32 v{vXD1}, {8192-1024}, v{vXD1}
    v_and_b32 v{vT+2}, 1, v{vT+2}
    v_lshlrev_b32 v{vT+2}, 2, v{vT+2}
    v_xor_b32 v{vT+3}, v{vT+1}, v{vT+2}
    v_lshlrev_b32 v{vT+3}, 4, v{vT+3}
    v_mul_u32_u24 v{vWD}, 3072, v{vT}
    v_add_u32 v{vWD}, v{vWD}, v{vT+3}
    v_lshl_add_u32 v{vPR}, v{vT}, 10, v{vT+3}
    s_lshl_b32 s{sXB}, s{sTB}, 17
    s_lshl_b32 s{sT0}, s{sW}, 14
    s_add_u32 s{sXB}, s{sXB}, s{sT0}
    s_lshl_b32 s{sC0}, s{sG1}, 7
    s_mul_i32 s{sT0}, s{sW}, {8*3072}
    s_add_u32 s{sC0}, s{sC0}, s{sT0}        ; g*128 + w*8 rows
    s_lshl_b32 s{sM0X}, s{sW}, 11
    s_lshl_b32 s{sM0W}, s{sW}, 10
    v_lshlrev_b32 v{vL16}, 4, v{vL}
    """)
    if INSTR:
        a(f"v_mov_b32 v{vST}, -1")
        stamp(a, 0)
    a(f"s_cmp_eq_u32 s{sT}, 0")
    a("s_waitcnt lgkmcnt(0)")
    srd(a, sX, 4, 2048*1024)
    srd(a, sWB, 14, 512*3072)
    srd(a, sWA, 6, 512*3072)
    a("s_cbranch_scc0 L_T1")

    def dma_piece(T, u, i):
        if u > 9 or (NODMA and u >= PD): return
        slot = (u % 5) * SLOT
        if u < 8:
            R1 = sWB if T else sWA
            if i == 0:
                a(f"""
                s_add_u32 s{sD0}, s{sROT}, {u}
                s_and_b32 s{sD0}, s{sD0}, 7
                s_lshl_b32 s{sD1}, s{sD0}, 7
                s_add_u32 m0, s{sM0X}, {slot}
                s_add_u32 s{sD1}, s{sD1}, s{sXB}
                buffer_load_dwordx4 v{vXD0}, {sr(sX,4)}, s{sD1} offen lds
                """)
            elif i == 1:
                a(f"buffer_load_dwordx4 v{vXD1}, {sr(sX,4)}, s{sD1} offen offset:1024 lds")
            elif i == 2:
                a(f"""
                s_mul_i32 s{sD0}, s{sD0}, {64*3072}
                s_add_u32 m0, s{sM0W}, {slot + 16384 - 1024*T}
                s_add_u32 s{sD0}, s{sD0}, s{sC0}
                buffer_load_dwordx4 v{vWD}, {sr(sWB,4)}, s{sD0} offen offset:{1024*T} lds
                """)
            else:
                a(f"""
                s_add_u32 m0, s{sM0W}, {slot + 24576 - 1024*(T+1)}
                buffer_load_dwordx4 v{vWD}, {sr(R1,4)}, s{sD0} offen offset:{1024*(T+1)} lds
                """)
        else:
            c2 = 0 if T else 2048
            a(f"""
            s_add_u32 s{sD0}, s{sROT}, {4*(u-8)+i}
            s_and_b32 s{sD0}, s{sD0}, 7
            s_mul_i32 s{sD0}, s{sD0}, {64*3072}
            s_add_u32 m0, s{sM0W}, {slot + i*8192 - c2}
            s_add_u32 s{sD0}, s{sD0}, s{sC0}
            buffer_load_dwordx4 v{vWD}, {sr(sWA,4)}, s{sD0} offen offset:{c2} lds
            """)
        vm.issue(("u", u))
    def dma_unit(T, u):
        for i in range(4): dma_piece(T, u, i)

    def setup(T):
        srd(a, sWOA, 10, 512*1024)
        srd(a, sWOB, 16, 512*1024)
        srd(a, sOUT, 20, 2048*1024)
        srd(a, sDB, 22, 256)
        srd(a, sGT, 18, 1024)
        a(f"""
        s_and_b32 s{sA}, s{sW}, 3
        s_lshr_b32 s{sT1}, s{sW}, 2
        s_lshl_b32 s{sT0}, s{sA}, 12
        v_and_b32 v{vT}, 31, v{vL}
        v_lshrrev_b32 v{vT+1}, 5, v{vL}
        v_bfe_u32 v{vT+2}, v{vL}, 1, 3
        v_xor_b32 v{vT+2}, v{vT+2}, v{vT+1}
        v_lshlrev_b32 v{vT}, 7, v{vT}
        v_add_u32 v{vT}, s{sT0}, v{vT}
        """)
        for j in range(4):
            a(f"v_xor_b32 v{vT+3}, {2*j}, v{vT+2}")
            a(f"v_lshl_add_u32 v{vXA+j}, v{vT+3}, 4, v{vT}")
            a(f"v_add_u32 v{vXA+4+j}, 0x10000, v{vXA+j}")
            a(f"v_add_u32 v{vXA+8+j}, 0x20000, v{vXA+j}")
        a(f"""
        v_bfe_u32 v{vT}, v{vL}, 2, 2            ; r
        v_lshrrev_b32 v{vT+2}, 1, v{vT}
        v_lshlrev_b32 v{vT+2}, 6, v{vT+2}
        v_lshl_add_u32 v{vT+2}, v{vT}, 7, v{vT+2}
        v_bfe_u32 v{vT}, v{vL}, 4, 1
        v_lshl_add_u32 v{vT+2}, v{vT}, 5, v{vT+2}
        v_and_b32 v{vT}, 3, v{vL}
        v_lshl_add_u32 v{vT+2}, v{vT}, 3, v{vT+2}   ; r*128 + (r>>1)*64 + g*32 + c*8
        s_lshl_b32 s{sT0}, s{sT1}, 6
        v_lshl_add_u32 v{vWA}, v{vT+1}, 10, v{vT+2}  ; + 8h rows
        v_xor_b32 v{vWA}, s{sT0}, v{vWA}
        v_add_u32 v{vWA+1}, 0x10000, v{vWA}
        v_add_u32 v{vWA+2}, 0x20000, v{vWA}
        s_lshl_b32 s{sPRIV}, s{sW}, 12
        s_add_u32 s{sPRIV}, s{sPRIV}, {SPARE}
        v_lshl_add_u32 v{vWR}, v{vT+1}, 9, v{vT+2}   ; + 4h rows
        v_add_u32 v{vWR}, s{sPRIV}, v{vWR}
        v_xor_b32 v{vWR+1}, 64, v{vWR}
        s_mov_b32 s{sL}, {f32(LOG2E)}
        s_mov_b32 s{sL+1}, {f32(LOG2E)}
        s_mov_b32 s{sNL}, {f32(-LOG2E)}
        s_mov_b32 s{sQS}, {f32(0.25*LOG2E)}
        s_mov_b32 s{sVM}, 0xffff
        s_mov_b32 s{sVM+1}, 0xffff
        s_lshl_b32 s{sHEAD}, s{sG}, 2
        s_and_b32 s{sT0}, s{sJ}, 3
        s_add_u32 s{sHEAD}, s{sHEAD}, s{sT0}
        s_lshr_b32 s{sQB}, s{sJ}, 2
        s_mov_b32 s{sCB}, s{sQB}
        s_lshl_b32 s{sT3T}, s{sHEAD}, 1
        s_add_u32 s{sT3T}, s{sT3T}, s{sT1}
        s_lshl_b32 s{sTILE}, s{sQB}, 3
        s_lshl_b32 s{sT0}, s{sA}, 1
        s_add_u32 s{sTILE}, s{sTILE}, s{sT0}
        s_add_u32 s{sTILE}, s{sTILE}, s{sT1}
        s_lshl_b32 s{sT0}, s{sT1}, 16
        v_add_u32 v{vKA}, s{sT0}, v{vL16}
        v_and_b32 v{vT}, 15, v{vL}
        v_lshl_add_u32 v{vT}, v{vT+1}, 4, v{vT}
        v_lshl_add_u32 v{vVA}, v{vT}, 4, s{sT0}
        v_mov_b32 v{vIDX}, 0xdddddddd
        s_lshl_b32 s{sKVL}, s{sA}, 11
        s_add_u32 s{sKVL}, s{sKVL}, s{sT0}
        s_lshl_b32 s{sWOS}, s{sA}, 17
        s_lshl_b32 s{sT0}, s{sCB}, 7
        s_add_u32 s{sWOS}, s{sWOS}, s{sT0}
        s_getreg_b32 s{sFAST}, hwreg(HW_REG_XCC_ID, 0, 4)
        s_add_u32 s{sFAST}, s{sFAST}, 1
        s_lshl_b32 s{sXO}, s{sG}, 7
        s_add_u32 s{sXO}, s{sXO}, {WS_FLG:#x}
        s_lshl_b32 s{sFO}, s{sJ}, 2
        s_add_u32 s{sFO}, s{sFO}, s{sXO}
        s_lshl_b32 s{sKVP}, s{sHEAD}, 16
        s_lshr_b32 s{sT0}, s{sW}, 1
        s_lshl_b32 s{sT0}, s{sT0}, 10
        s_add_u32 s{sKVP}, s{sKVP}, s{sT0}
        s_and_b32 s{sT0}, s{sW}, 1
        s_lshl_b32 s{sT0}, s{sT0}, {9 if KPM else 3}
        s_add_u32 s{sKVP}, s{sKVP}, s{sT0}
        s_add_u32 s{sKVP}, s{sKVP}, {WS_KVP:#x}
        s_lshl_b32 s{sGTOK}, s{sQB}, 8
        s_lshr_b32 s{sT0}, s{sHEAD}, 1
        s_lshl_b32 s{sT0}, s{sT0}, 3
        s_add_u32 s{sT0}, s{sT0}, s{sW}
        s_lshl_b32 s{sT0}, s{sT0}, 1
        s_add_u32 s{sGTOK}, s{sGTOK}, s{sT0}
        s_lshl_b32 s{sST}, s{sG1}, 1
        s_add_u32 s{sST}, s{sST}, s{sT1}
        s_lshl_b32 s{sST}, s{sST}, 18
        s_lshl_b32 s{sT0}, s{sTB}, 2
        s_add_u32 s{sT0}, s{sT0}, s{sA}
        s_lshl_b32 s{sT0}, s{sT0}, 11
        s_add_u32 s{sST}, s{sST}, s{sT0}
        v_and_b32 v{vT}, 15, v{vL}
        v_lshlrev_b32 v{vT}, 3, v{vT}
        v_lshl_add_u32 v{vT}, v{vT+1}, 7, v{vT}
        s_lshl_b32 s{sT0}, s{sT1}, 10
        s_add_u32 s{sT0}, s{sT0}, {SPARE}
        v_add_u32 v{vT+14}, s{sT0}, v{vT}
        v_bfe_u32 v{vT}, v{vL}, 4, 1
        v_mul_u32_u24 v{vT+15}, 0x8000, v{vT}
        v_lshl_or_b32 v{vT+15}, v{vT+15}, 16, v{vT+15}
        """)
        if T == 1:
            a(f"""
            v_bfe_u32 v{vT}, v{vL}, 2, 1
            v_bfe_u32 v{vT+3}, v{vL}, 3, 1
            v_and_b32 v{vT+2}, 0x33, v{vL}
            v_lshl_or_b32 v{vT+2}, v{vT}, 3, v{vT+2}
            v_lshl_or_b32 v{vT+2}, v{vT+3}, 2, v{vT+2}
            v_lshlrev_b32 v{vKS}, 4, v{vT+2}
            v_bfe_u32 v{vT}, v{vL}, 4, 1
            v_and_b32 v{vT+2}, 0xffff, v{vVA}
            v_lshl_add_u32 v{vVS}, v{vT}, 17, v{vT+2}
            """)

    def kv_round(r):
        a(f"s_add_u32 s{sT0}, s{sQB}, {r}")
        a(f"s_and_b32 s{sT0}, s{sT0}, 7")
        a(f"s_lshl_b32 s{sT0}, s{sT0}, 14")
        a(f"s_add_u32 m0, s{sKVL}, {r*8192}")
        a(f"s_add_u32 s{sT0}, s{sT0}, s{sXB}")
        a(f"buffer_load_dwordx4 v{vL16}, {sr(sWS,4)}, s{sT0} offen sc1 lds")
        a(f"buffer_load_dwordx4 v{vL16}, {sr(sWS,4)}, s{sT0} offen offset:1024 sc1 lds")
        vm.issue(("r", r), 2)
    def lf_issue():
        a(f"""
        v_and_b32 v{vU}, 31, v{vL}
        v_lshlrev_b32 v{vU}, 2, v{vU}
        buffer_load_dword v{vPOLL}, v{vU}, {sr(sWS,4)}, s{sXO} offen sc1
        """)
        vm.issue("lf")
    def start_kv():
        stamp(a, 22)
        vm.wait("lf")
        lo, ld, l2, l3, l4 = newlabel("sp"), newlabel("sd"), newlabel("sn"), newlabel("sr"), newlabel("sq")
        a(f"s_mov_b32 s{sCNT}, 0")
        a.label(lo)
        a(f"v_cmp_ne_u32 vcc, s{sFAST}, v{vPOLL}")
        if FASTOK: a(f"s_cbranch_vccz {ld}")
        a(f"s_add_u32 s{sCNT}, s{sCNT}, 1")
        a(f"s_cmp_lt_u32 s{sCNT}, {TMO}")
        a(f"s_cbranch_scc1 {l2}")
        a(f"s_lshl_b32 s{sT1}, s{sG}, 8")
        a(f"s_add_u32 s{sT1}, s{sT1}, {WS_CNT:#x}")
        a(f"s_cmp_lg_u32 s{sCNT}, {TMO}")
        a(f"s_cbranch_scc1 {l3}")
        a(f"s_cmp_lg_u32 s{sW}, 0")
        a(f"s_cbranch_scc1 {l3}")
        a(f"v_mov_b32 v{vPOLL}, 1")
        a("s_mov_b64 exec, 1")
        a(f"buffer_atomic_add v{vPOLL}, off, {sr(sWS,4)}, s{sT1} sc1")
        a("s_mov_b64 exec, -1")
        a.label(l3)
        a("s_sleep 16")
        a(f"buffer_load_dword v{vPOLL}, off, {sr(sWS,4)}, s{sT1} sc1")
        a("s_waitcnt vmcnt(0)")
        a(f"v_readfirstlane_b32 s{sT3}, v{vPOLL}")
        a(f"s_cmp_ge_u32 s{sT3}, 32")
        a(f"s_cbranch_scc1 {ld}")
        a.label(l2)
        a(f"buffer_load_dword v{vPOLL}, v{vU}, {sr(sWS,4)}, s{sXO} offen sc1")
        a(f"s_cmp_lt_u32 s{sCNT}, {SPIN_MAX}")
        a("s_waitcnt vmcnt(0)")
        a(f"s_cbranch_scc1 {lo}")
        a.label(ld)
        stamp(a, 4)
        a(f"""
        s_lshl_b32 s{sXB}, s{sHEAD}, 17
        s_lshl_b32 s{sT0}, s{sW}, 11
        s_add_u32 s{sXB}, s{sXB}, s{sT0}
        s_lshl_b32 s{sT0}, s{sHEAD}, 16
        s_lshl_b32 s{sT1}, s{sTILE}, 10
        s_add_u32 s{sT0}, s{sT0}, s{sT1}
        s_add_u32 s{sT0}, s{sT0}, {WS_Q:#x}
        s_xor_b32 s{sT1}, s{sT0}, 1024
        buffer_load_dwordx4 {vr(QF[0],4)}, v{vL16}, {sr(sWS,4)}, s{sT0} offen sc1
        buffer_load_dwordx4 {vr(QF[1],4)}, v{vL16}, {sr(sWS,4)}, s{sT1} offen sc1
        """)
        vm.issue(("r", 0), 2)
        for r in range(NR0): kv_round(r)
    def p2_init():
        Z = 176
        L = [f"v_and_b32 v{vU+1}, 27, v{vL}", f"v_cmp_eq_u32 vcc, 16, v{vU+1}", f"v_mov_b32 v{vU+2}, 0x3f803f80",
             f"v_mov_b64 {vr(Z,2)}, 0", f"v_mov_b64 {vr(Z+2,2)}, 0",
             f"v_cndmask_b32 v{VF[0]}, 0, v{vU+2}, vcc", f"v_cndmask_b32 v{VF[0]+1}, 0, v{vU+2}, vcc",
             f"v_mfma_f32_32x32x16_bf16 {vr(O0,16)}, {vr(Z,4)}, {vr(Z,4)}, 0",
             f"v_mfma_f32_32x32x16_bf16 {vr(O1,16)}, {vr(Z,4)}, {vr(Z,4)}, 0"]
        L += [f"v_mov_b64 {vr(VF[0]+2*i,2)}, {vr(VF[0],2)}" for i in range(1, 8)]
        return L

    def p1(T):
        vm.reset(); lg.reset()
        GX, GW, GR = vT, vT + 8, vT + 12
        dma_unit(T, 0)
        srd(a, sWS, 24, WS_END)
        if T == 0:
            a(f"""
            s_cmp_lg_u32 s2, 0
            s_cbranch_scc1 L_NOZERO
            v_mov_b64 {vr(vT+4,2)}, 0
            v_mov_b64 {vr(vT+6,2)}, 0
            s_lshl_b32 s{sT0}, s{sW}, 11
            s_add_u32 s{sT0}, s{sT0}, {WS_F2:#x}
            buffer_store_dwordx4 {vr(vT+4,4)}, v{vL16}, {sr(sWS,4)}, s{sT0} offen sc1
            buffer_store_dwordx4 {vr(vT+4,4)}, v{vL16}, {sr(sWS,4)}, s{sT0} offen offset:1024 sc1
            s_cmp_lg_u32 s{sW}, 0
            s_cbranch_scc1 L_NOZERO
            v_lshlrev_b32 v{vT}, 8, v{vL}
            s_mov_b32 s{sT0}, {WS_CNT:#x}
            s_mov_b64 exec, 0xff
            buffer_store_dword v{vT+4}, v{vT}, {sr(sWS,4)}, s{sT0} offen sc1
            s_mov_b64 exec, -1
            s_mov_b32 s{sT0}, {WS_FLG:#x}
            buffer_store_dwordx4 {vr(vT+4,4)}, v{vL16}, {sr(sWS,4)}, s{sT0} offen sc1
            """)
            a.label("L_NOZERO")
        srd(a, sPH, 8, 32*512)
        a(f"""
        s_lshl_b32 s{sT0}, s{sW}, 8
        s_add_u32 m0, s{sT0}, {SPARE}
        s_lshl_b32 s{sT1}, s{sG1}, 11
        s_add_u32 s{sT1}, s{sT1}, s{sT0}
        v_lshlrev_b32 v{vT}, 2, v{vL}
        buffer_load_dword v{vT}, {sr(sPH,4)}, s{sT1} offen lds
        s_lshl_b32 s{sT0}, s{sJ}, 10
        v_lshlrev_b32 v{vT+1}, 1, v0
        v_and_b32 v{vT+1}, 0x3fc, v{vT+1}
        v_add_u32 v{vT+1}, s{sT0}, v{vT+1}
        v_min_u32 v{vT+1}, CODE_SPAN, v{vT+1}
        """)
        vm.issue(("u", 0))
        if not NOPF:
            a(f"global_load_dword v{vPOLL}, v{vT+1}, s[26:27]"); vm.issue("pf")
        for u in range(1, PD): dma_unit(T, u)
        setup(T)
        if WT0:
            lab = newlabel("wt")
            a(f"""
            s_cmp_lg_u32 s{sW}, 3
            s_cbranch_scc1 {lab}
            s_lshl_b32 s{sT0}, s2, 11
            v_lshlrev_b32 v{vT}, 7, v{vL}
            s_mov_b64 exec, 0xffff
            buffer_load_dword v{vPOLL}, v{vT}, {sr(sWOA,4)}, s{sT0} offen
            buffer_load_dword v{vPOLL}, v{vT}, {sr(sWOB,4)}, s{sT0} offen
            s_mov_b64 exec, -1
            {lab}:
            """)
        if TLB:
            lab = newlabel("tl")
            a(f"""
            s_cmp_lg_u32 s{sW}, 2
            s_cbranch_scc1 {lab}
            v_lshlrev_b32 v{vT}, 21, v{vL}
            s_lshl_b32 s{sT0}, s{sJ}, 16
            s_mov_b64 exec, 0x3ff
            buffer_load_dword v{vPOLL}, v{vT}, {sr(sWS,4)}, s{sT0} offen
            s_mov_b64 exec, 1
            buffer_load_dword v{vPOLL}, off, {sr(sOUT,4)}, s{sT0}
            s_lshl_b32 s{sT0}, s{sJ}, 14
            buffer_load_dword v{vPOLL}, off, {sr(sWOA,4)}, s{sT0}
            buffer_load_dword v{vPOLL}, off, {sr(sWOB,4)}, s{sT0}
            buffer_load_dword v{vPOLL}, off, {sr(sDB,4)}, 0
            buffer_load_dword v{vPOLL}, off, {sr(sGT,4)}, 0
            s_mov_b64 exec, -1
            {lab}:
            """)
        wb = lambda st: WBUF + 8 * (st % 3)
        def rd1(st, part):
            if NORD: return
            u, j = st // 4, st % 4
            slot = u % 5; so = (slot % 2) * SLOT
            if part == 0:
                a(f"ds_read_b128 {vr(XF+4*st,4)}, v{vXA+4*(slot//2)+j} offset:{so}"); lg.issue(("f", st))
            else:
                s_ = part - 1
                for wh in range(2):
                    a(f"ds_read_b64_tr_b16 {vr(wb(st)+4*s_+2*wh,2)}, v{vWA+slot//2} offset:{so + 16384 + s_*8192 + j*2048 + wh*512}")
                lg.issue(("f", st), 2)
        wb2 = lambda s_: WBUF + 8 * ((32 + s_ // 2) % 3) + 4 * (s_ % 2)
        def rd2(s_):
            if s_ > 31: return
            u = 8 + s_ // 16; slot = u % 5; so = (slot % 2) * SLOT
            for wh in range(2):
                a(f"ds_read_b64_tr_b16 {vr(wb2(s_)+2*wh,2)}, v{vWA+slot//2} offset:{so + (s_%16)*2048 + wh*512}")
            lg.issue(("g", s_), 2)
        def mf(A, wreg, st, vtype, first):
            if NOMF and A != A2 and not first: return
            c = "0" if first else vr(A, 16)
            x_, w_ = vr(XF + 4 * st, 4), vr(wreg, 4)
            a(f"v_mfma_f32_32x32x16_bf16 {vr(A,16)}, {x_ if vtype else w_}, {w_ if vtype else x_}, {c}")
        def step1(st, nxt):
            mf(A0, wb(st), st, False, st == 0)
            if nxt: nxt(0)
            mf(A1, wb(st) + 4, st, T == 1, st == 0)
            if nxt: nxt(1)
        def nx1(st):
            def f(h):
                if h == 0: rd1(st, 0)
                rd1(st, h + 1)
            return f
        for u in range(8):
            vm.wait(("u", u)); a("s_barrier")
            if u == 0: stamp(a, 1)
            for part in range(3): rd1(4 * u, part)
            if u == 0:
                for st in (1, 2):
                    for part in range(3): rd1(st, part)
                for i in range(4): a(f"ds_read_b64_tr_b16 {vr(WP+2*i,2)}, v{vT+14} offset:{256*i}")
                lg.issue("wp", 4)
                if LA:
                    for i in range(2 if SPREAD else 4): dma_piece(T, PD, i)
                else:
                    for m in range(PD, 4): dma_unit(T, m)
            else:
                step1(4 * u - 2, nx1(4 * u + 1))
                if LA:
                    for i in range(1 if SPREAD else 4): dma_piece(T, u + PD, i)
                else:
                    if u == 1: dma_unit(T, 4)
                    if u + 4 <= 9: dma_unit(T, u + 4)
                step1(4 * u - 1, nx1(4 * u + 2))
                if LA and SPREAD: dma_piece(T, u + PD, 1)
            if u == 1 and T == 0:
                a(f"""
                s_or_b32 s{sT0}, s2, s{sW}
                s_cmp_lg_u32 s{sT0}, 0
                s_cbranch_scc1 L_NOGUARD
                v_mov_b32 v{vT+1}, 1
                s_mov_b64 exec, 1
                buffer_store_dword v{vT+1}, off, {sr(sDB,4)}, 0 sc1
                s_mov_b64 exec, -1
                L_NOGUARD:
                """)
            if u == 2:
                if T == 1:
                    a(f"""
                    s_lshl_b32 s{sT0}, s{sGTOK}, 10
                    buffer_load_dwordx4 {vr(GX,4)}, v{vL16}, {sr(sX,4)}, s{sT0} offen
                    buffer_load_dwordx4 {vr(GX+4,4)}, v{vL16}, {sr(sX,4)}, s{sT0} offen offset:1024
                    buffer_load_dwordx4 {vr(GW,4)}, v{vL16}, {sr(sGT,4)}, 0 offen
                    """)
                    vm.issue("gate", 3)
                for i in range(8): a(f"v_xor_b32 v{WP+i}, v{vT+15}, v{WP+i}")
            if u == 3 and T == 0:
                t = vT
                a(f"""
                v_bfe_u32 v{t}, v{vL}, 2, 1
                v_lshrrev_b32 v{t+1}, 5, v{vL}
                v_bfe_u32 v{t+2}, v{vL}, 3, 1
                v_bfe_u32 v{t+3}, v{vL}, 1, 1
                v_lshl_add_u32 v{t+2}, v{t+2}, 1, v{t+3}
                v_and_b32 v{t+3}, 1, v{vL}
                v_lshlrev_b32 v{t+3}, 4, v{t+3}
                v_mov_b32 v{t+5}, 0x3f80
                v_cmp_eq_u32 vcc, v{t}, v{t+1}
                v_lshlrev_b32 v{t+3}, v{t+3}, v{t+5}
                v_bfe_u32 v{t}, v{vL}, 4, 1
                v_cndmask_b32 v{t+3}, 0, v{t+3}, vcc
                v_lshl_add_u32 v{t+2}, v{t}, 2, v{t+2}
                """)
            if u == 4 and T == 0:
                t = vT
                for i in range(0, 8, 2):
                    a(f"v_cmp_eq_u32 vcc, {i}, v{t+2}")
                    a(f"v_cmp_eq_u32 s[96:97], {i+1}, v{t+2}")
                    a(f"v_cndmask_b32 v{vT+8+i}, 0, v{t+3}, vcc")
                    a(f"v_cndmask_b32 v{vT+8+i+1}, 0, v{t+3}, s[96:97]")
                a(f"""
                s_lshr_b32 s{sT0}, s{sW}, 2
                s_lshl_b32 s{sT0}, s{sT0}, 16
                s_lshl_b32 s{sT1}, s{sA}, 12
                s_add_u32 s{sT0}, s{sT0}, s{sT1}
                s_add_u32 s{sT0}, s{sT0}, 32768
                v_add_u32 v{vKS}, s{sT0}, v{vL16}
                v_xor_b32 v{vVS}, 256, v{vKS}
                """)
            if u == 6:
                po.issue(sDB, None, 0)
            lg.wait(("f", 4 * u)); step1(4 * u, nx1(4 * u + 3))
            if LA and SPREAD: dma_piece(T, u + PD, 2)
            if u == 7 and T == 1:
                vm.wait("gate")
                for i in range(4):
                    for t in range(2):
                        r = GR + 2 * t
                        a(f"v_dot2_f32_bf16 v{r}, v{GX+4*t+i}, v{GW+i}, {'0' if i == 0 else 'v%d' % r}")
            lg.wait(("f", 4 * u + 1)); step1(4 * u + 1, None)
            if LA and SPREAD: dma_piece(T, u + PD, 3)
            lg.all()
        vm.wait(("u", 8)); a("s_barrier")
        stamp(a, 2)
        rd2(0); rd2(1)
        step1(30, lambda h: rd2(2 + h))
        step1(31, lambda h: rd2(4 + h))
        gate = lambda r: f"""v_add_f32_dpp v{r}, v{r}, v{r} quad_perm:[1,0,3,2] row_mask:0xf bank_mask:0xf
        v_add_f32_dpp v{r}, v{r}, v{r} quad_perm:[2,3,0,1] row_mask:0xf bank_mask:0xf
        v_add_f32_dpp v{r}, v{r}, v{r} row_half_mirror row_mask:0xf bank_mask:0xf
        v_add_f32_dpp v{r}, v{r}, v{r} row_mirror row_mask:0xf bank_mask:0xf
        v_mov_b32 v{r+1}, v{r}
        v_permlane16_swap_b32 v{r}, v{r+1}
        v_add_f32 v{r}, v{r}, v{r+1}
        v_mov_b32 v{r+1}, v{r}
        v_permlane32_swap_b32 v{r}, v{r+1}
        v_add_f32 v{r}, v{r}, v{r+1}
        v_cvt_pk_bf16_f32 v{r}, v{r}, v{r}
        v_and_b32 v{r}, 0xffff0000, v{r}
        v_mul_f32 v{r}, s{sNL}, v{r}
        v_exp_f32 v{r}, v{r}
        v_add_f32 v{r}, 1.0, v{r}
        v_rcp_f32 v{r}, v{r}
        v_cvt_pk_bf16_f32 v{r}, v{r}, v{r}
        v_and_b32 v{r}, 0xffff0000, v{r}
        v_sub_f32 v{r+1}, 1.0, v{r}
        v_cvt_pk_bf16_f32 v{r+1}, v{r+1}, v{r+1}
        v_and_b32 v{r+1}, 0xffff0000, v{r+1}""".split("\n")
        gate_st = [f"s_lshl_b32 s{sT0}, s{sGTOK}, 3\ns_add_u32 s{sT0}, s{sT0}, {WS_G:#x}\ns_mov_b64 exec, 1\n"
                   f"buffer_store_dwordx4 {vr(GR,4)}, off, {sr(sWS,4)}, s{sT0} sc1\ns_mov_b64 exec, -1"]
        E = 80
        if T == 1:
            KPK, VPK = 80, 64
            def sts(b0, b1, fl):
                return [f"buffer_store_dwordx4 {vr(KPK,4)}, v{vKS}, {sr(sWS,4)}, s{b0} offen{fl}",
                        f"buffer_store_dwordx4 {vr(KPK+4,4)}, v{vKS}, {sr(sWS,4)}, s{b1} offen{fl}",
                        f"buffer_store_dwordx4 {vr(VPK,4)}, v{vVS}, {sr(sWS,4)}, s{b0} offen offset:1024{fl}",
                        f"buffer_store_dwordx4 {vr(VPK+4,4)}, v{vVS}, {sr(sWS,4)}, s{b0} offen offset:1536{fl}"]
            lo_ = sts(sST, sT2, " sc1"); gl_ = []
            F = [f"s_add_u32 s{sT2}, s{sST}, 0x20000"]
            if not QS: F += [f"v_mul_f32 v{A0+i}, s{sQS}, v{A0+i}" for i in range(16)]
            F += [f"v_cvt_pk_bf16_f32 v{VPK+i}, v{A1+2*i}, v{A1+2*i+1}" for i in range(8)]
            F += lo_[2:]
            F += [f"v_cvt_pk_bf16_f32 v{KPK+i}, v{A0+2*i}, v{A0+2*i+1}" for i in range(8)]
            F += lo_[:2]
            F1 = F; F2 = interleave(gate(GR), gate(GR + 2)) + gate_st
        else:
            QPK, KPK = 80, 64
            F = [f"v_mul_f32 v{A0+i}, s{sQS}, v{A0+i}" for i in range(16)] if QS else []
            F += [f"v_cvt_pk_bf16_f32 v{QPK+i}, v{A0+2*i}, v{A0+2*i+1}" for i in range(8)]
            F += [f"s_lshr_b32 s{sT2}, s{sST}, 1\ns_add_u32 s{sT0}, s{sT2}, {WS_Q:#x}\ns_add_u32 s{sT1}, s{sT0}, 0x10000\n"
                  f"buffer_store_dwordx4 {vr(QPK,4)}, v{vL16}, {sr(sWS,4)}, s{sT0} offen sc1",
                  f"buffer_store_dwordx4 {vr(QPK+4,4)}, v{vL16}, {sr(sWS,4)}, s{sT1} offen sc1"]
            F += [f"v_cvt_pk_bf16_f32 v{KPK+i}, v{A1+2*i}, v{A1+2*i+1}" for i in range(8)]
            F += [f"v_mfma_f32_32x32x16_bf16 {vr(A0,16)}, {vr(WP,4)}, {vr(KPK,4)}, 0",
                  f"v_mfma_f32_32x32x16_bf16 {vr(A1,16)}, {vr(WP+4,4)}, {vr(KPK+4,4)}, 0"]
            OK_ = 128
            F1 = F
            F2 = interleave(phi_softmax(A0, 64, OK_, SCAL), phi_softmax(A1, 80, OK_ + 8, SCAL))
        fill = {s_: [] for s_ in range(32)}
        n1 = N1 if T else 3
        for i, ins in enumerate(F1): fill[1 + i * n1 // len(F1)].append(ins)
        lo = 1 + n1 + (0 if T else 2)
        for i, ins in enumerate(F2): fill[lo + i * (32 - lo) // len(F2)].append(ins)
        for s_ in range(32):
            SF = SA1 if T else SA0
            if s_ == 10 or s_ == SF:
                if s_ == 10:
                    vm.wait(("u", 9)); po.check(1)
                if s_ == SF:
                    stamp(a, 20); vm.wait("st")
                a("s_barrier")
                if s_ == SF:
                    lab = newlabel("lf")
                    a(f"""
                    s_cmp_lg_u32 s{sW}, 1
                    s_cbranch_scc1 {lab}
                    v_mov_b32 v{vU}, s{sFAST}
                    s_mov_b64 exec, 1
                    buffer_store_dword v{vU}, off, {sr(sWS,4)}, s{sFO}
                    s_mov_b64 exec, -1
                    {lab}:
                    """)
                    stamp(a, 21)
            lg.wait(("g", s_))
            mf(A2, wb2(s_), s_, T == 0, s_ == 0)
            rd2(s_ + 6)
            for ins in fill[s_]:
                a(ins)
                if "buffer_store" in ins: vm.issue("gst" if "exec" in ins else ("st" if "sc1" in ins else "stl"))
            if s_ == SB10:
                lg.all(); a("s_barrier")
            if s_ == 28 and T == 0: lf_issue()
        stamp(a, 3)
        init = p2_init()
        if T == 1:
            FQ, OQ = 128, 152
            for ins in init[:7]: a(ins)
            for i in range(8): a(f"v_cvt_pk_bf16_f32 v{FQ+i}, v{A2+2*i}, v{A2+2*i+1}")
            a(f"v_mfma_f32_32x32x16_bf16 {vr(A0,16)}, {vr(WP,4)}, {vr(FQ,4)}, 0")
            a(f"v_mfma_f32_32x32x16_bf16 {vr(A1,16)}, {vr(WP+4,4)}, {vr(FQ+4,4)}, 0")
            for ins in init[7:]: a(ins)
            lf_issue()
            qs = interleave(phi_softmax(A0, 136, OQ), phi_softmax(A1, 144, OQ + 8))
            for ins in qs[:CK1]: a(ins)
            start_kv()
            for ins in qs[CK1:]: a(ins)
        else:
            ID0, ID1, FV, VM0, VM1, t = vT + 8, vT + 12, 152, 160, 168, 180
            a(f"""
            v_mfma_f32_32x32x16_bf16 {vr(A0,16)}, {vr(OK_,4)}, {vr(ID0,4)}, 0
            v_mfma_f32_32x32x16_bf16 {vr(A1,16)}, {vr(OK_+8,4)}, {vr(ID0,4)}, 0
            v_mfma_f32_32x32x16_bf16 {vr(A0,16)}, {vr(OK_+4,4)}, {vr(ID1,4)}, {vr(A0,16)}
            v_mfma_f32_32x32x16_bf16 {vr(A1,16)}, {vr(OK_+12,4)}, {vr(ID1,4)}, {vr(A1,16)}
            """)
            start_kv()
            a(f"v_mov_b32 v{t}, 0x3f803f80")
            a(f"v_mov_b32 v{t+1}, 0x3f803f80")
            for i in range(8): a(f"v_mov_b64 {vr(VM0+2*i,2)}, {vr(t,2)}")
            a(f"s_mov_b64 exec, {sr(sVM,2)}")
            for i in range(8): a(f"v_cvt_pk_bf16_f32 v{VM0+i}, v{A2+2*i}, v{A2+2*i+1}")
            a(f"s_not_b64 exec, exec")
            for i in range(8): a(f"v_cvt_pk_bf16_f32 v{VM1+i}, v{A2+2*i}, v{A2+2*i+1}")
            a("s_mov_b64 exec, -1")
            for i in range(8): a(f"v_cvt_pk_bf16_f32 v{OK_+i}, v{A0+2*i}, v{A0+2*i+1}")
            for i in range(8): a(f"v_cvt_pk_bf16_f32 v{OK_+8+i}, v{A1+2*i}, v{A1+2*i+1}")
            a(f"""
            v_mfma_f32_32x32x16_bf16 {vr(A0,16)}, {vr(OK_,4)}, {vr(VM0,4)}, 0
            v_mfma_f32_32x32x16_bf16 {vr(A1,16)}, {vr(OK_+8,4)}, {vr(VM1,4)}, 0
            v_mfma_f32_32x32x16_bf16 {vr(A0,16)}, {vr(OK_+4,4)}, {vr(VM0+4,4)}, {vr(A0,16)}
            v_mfma_f32_32x32x16_bf16 {vr(A1,16)}, {vr(OK_+12,4)}, {vr(VM1+4,4)}, {vr(A1,16)}
            """)
            for ins in init: a(ins)
            for q in range(4): a(f"ds_write_b128 v{vKS}, {vr(A0+4*q,4)} offset:{q*1024}")
            for q in range(4): a(f"ds_write_b128 v{vVS}, {vr(A1+4*q,4)} offset:{16384+q*1024}")
            a("s_waitcnt lgkmcnt(0)")
        stamp(a, 23)
        vm.wait(("r", 1))
        a("s_barrier")
    y0 = p1(0)
    a("s_branch L_P2")
    a.label("L_T1")
    y1 = p1(1)

    a.label("L_P2")
    vm.reset(); lg.reset()
    stamp(a, 5)
    def rdK(t, buf):
        if t > 31: return
        a(f"ds_read_b128 {vr(KF[buf],4)}, v{vKA} offset:{t*2048}"); lg.issue(("k", t))
    def rdV(t, buf):
        if t > 31: return
        a(f"s_mov_b64 exec, {sr(sVM,2)}")
        a(f"ds_read_b128 {vr(VF[buf],4)}, v{vVA} offset:{t*2048+1024}")
        a(f"ds_read_b128 {vr(VF[buf]+4,4)}, v{vVA} offset:{t*2048+1536}")
        a("s_mov_b64 exec, -1")
        lg.issue(("v", t), 2)
    a(f"ds_read_b128 {vr(NM,4)}, v{vL16}"); lg.issue("k00")
    rdK(0, 0); rdK(1, 1); rdV(0, 0)
    lg.wait("k00")
    a(f"v_mfma_f32_32x32x16_bf16 {vr(S0,16)}, {vr(NM,4)}, {vr(QF[0],4)}, 0")
    a(f"v_mfma_f32_32x32x16_bf16 {vr(S1,16)}, {vr(NM,4)}, {vr(QF[1],4)}, 0")
    def max_tree(t, regs, init):
        rest = list(regs)
        if init:
            a(f"v_max3_f32 v{t}, v{rest[0]}, v{rest[1]}, v{rest[2]}"); rest = rest[3:]
        while len(rest) >= 2:
            a(f"v_max3_f32 v{t}, v{rest[0]}, v{rest[1]}, v{t}"); rest = rest[2:]
        if rest: a(f"v_max_f32 v{t}, v{rest[0]}, v{t}")
    def set_negm(t):
        a(f"v_mov_b32 v{t+1}, v{t}")
        a(f"v_permlane32_swap_b32 v{t}, v{t+1}")
        a(f"v_max_f32 v{t}, v{t}, v{t+1}")
        for i in range(16): a(f"v_sub_f32 v{NM+i}, 0, v{t}")
    def cond(cmp, f):
        lab = newlabel("cn")
        a(cmp); a(f"s_cbranch_scc1 {lab}"); f(); a.label(lab)
    role_a = lambda f: cond(f"s_cmp_lt_u32 s{sW}, 4", f)
    only_t0 = lambda f: cond(f"s_cmp_lg_u32 s{sT}, 0", f)
    if FAIR: role_a(lambda: a("s_setprio 1"))
    max_tree(vU, range(S0, S0 + 32), True)
    set_negm(vU)
    def qk(dst, buf, q):
        a(f"v_mfma_f32_32x32x16_bf16 {vr(dst,16)}, {vr(KF[buf],4)}, {vr(QF[q],4)}, {vr(NM,16)}")
    def sm(src, buf, half, o):
        a(f"v_smfmac_f32_32x32x32_bf16 {vr(o,16)}, {vr(VF[buf]+4*half,4)}, {vr(src+8*half,8)}, v{vIDX}")
    lg.wait(("k", 0))
    qk(S0, 0, 0)
    KP, PQ, AO = 192, 228, 236
    KVF = 192
    def t0_read():
        a(f"""
        s_lshr_b32 s{sT0}, s{sW}, 2
        s_lshl_b32 s{sT0}, s{sT0}, 16
        s_bfe_u32 s{sT1}, s{sW}, 0x10001
        s_lshl_b32 s{sT1}, s{sT1}, 14
        s_add_u32 s{sT0}, s{sT0}, s{sT1}
        s_and_b32 s{sT1}, s{sW}, 1
        s_lshl_b32 s{sT1}, s{sT1}, 11
        s_add_u32 s{sT0}, s{sT0}, s{sT1}
        s_add_u32 s{sT0}, s{sT0}, 32768
        v_add_u32 v{vU}, s{sT0}, v{vL16}
        """)
        for u in range(2):
            for t in range(4): a(f"ds_read_b128 {vr(KP+16*u+4*t,4)}, v{vU} offset:{u*1024+t*4096}")
    for r in range(NR0, 4): kv_round(r)
    only_t0(t0_read)
    def wo_dma(k, n):
        R = sWOA if k < 8 else sWOB
        a(f"s_mov_b32 m0, s{sPRIV}")
        for i in range(2 * n):
            a(f"s_add_u32 s{sT0}, s{sWOS}, {(k%8)*16384 + i*(8192-1024)}")
            a(f"buffer_load_dwordx4 v{vPR}, {sr(R,4)}, s{sT0} offen offset:{i*1024} lds")
        vm.issue(("wo", k), 2 * n)
    def wo_read(k, n):
        vm.wait(("wo", k))
        for st in range(n):
            for p_ in range(2):
                for wh in range(2):
                    a(f"ds_read_b64_tr_b16 {vr(WO+8*(k+st)+4*p_+2*wh,2)}, v{vWR+p_} offset:{st*2048+wh*1024}")
        lg.issue("wor", 4 * n)
    def kp_load(i):
        a(f"s_add_u32 s{sT0}, s{sPO}, {i*4096}")
        a(f"s_and_b32 s{sT0}, s{sT0}, 0xffff")
        a(f"s_add_u32 s{sT0}, s{sT0}, s{sKVP}")
        if KPM and i == 0: a(f"v_lshlrev_b32 v{vU+2}, 3, v{vL}")
        a(f"buffer_load_dwordx2 {vr(KP+2*i,2)}, v{vU+2 if KPM else vL16}, {sr(sWS,4)}, s{sT0} offen sc1")
        vm.issue("kp")
    P17, PF2, P20 = 6, opt("pf2", 14), 26
    if WLATE: WSCH = [(29 + 4 * k, 32 + 4 * k, 2 * k, 2) for k in range(8)]
    else: WSCH = [(2, 9, 0, 2), (10, 14, 2, 2), (15, 19, 4, 2), (20, 24, 6, 2)] + [(30 + 4 * k, 33 + 4 * k, 8 + k, 1) for k in range(8)]
    def put_flag(sreg):
        a(f"v_mov_b32 v{vU}, 1")
        a("s_mov_b64 exec, 1")
        a(f"buffer_store_dword v{vU}, off, {sr(sWS,4)}, s{sreg} sc1")
        a("s_mov_b64 exec, -1")
        vm.issue("flag")
    def flag_spin(vaddr):
        lo, ld = newlabel("sp"), newlabel("sd")
        a(f"s_mov_b32 s{sCNT}, 0")
        a.label(lo)
        a(f"v_cmp_eq_u32 vcc, 0, v{vPOLL}")
        a(f"s_cbranch_vccz {ld}")
        a("s_sleep 4")
        a(f"buffer_load_dword v{vPOLL}, v{vaddr}, {sr(sWS,4)}, s{sFP} offen sc1")
        a(f"s_add_u32 s{sCNT}, s{sCNT}, 1")
        a(f"s_cmp_lt_u32 s{sCNT}, {SPIN_MAX}")
        a("s_waitcnt vmcnt(0)")
        a(f"s_cbranch_scc1 {lo}")
        a.label(ld)
    mark = {}
    GV = 12
    def fair(p):
        if FAIR:
            if p % 4 == FAIR % 4 and FAIR < 4: role_a(lambda: a("s_setprio 0"))
            if p % 4 == 0 and p: role_a(lambda: a("s_setprio 1"))
    def side(p):
        if p == 1:
            def f():
                a(f"""
                s_lshl_b32 s{sT0}, s{sG1}, 2
                s_lshr_b32 s{sT1}, s{sW}, 1
                s_add_u32 s{sT0}, s{sT0}, s{sT1}
                s_lshl_b32 s{sT0}, s{sT0}, 16
                s_lshl_b32 s{sT1}, s{sTB}, 12
                s_add_u32 s{sT0}, s{sT0}, s{sT1}
                s_and_b32 s{sT1}, s{sW}, 1
                s_lshl_b32 s{sT1}, s{sT1}, 11
                s_add_u32 s{sT0}, s{sT0}, s{sT1}
                s_add_u32 s{sT0}, s{sT0}, {WS_KVP:#x}
                s_waitcnt lgkmcnt(3)
                """)
                for u in range(2):
                    b = KP + 16 * u
                    for i in range(8): a(f"v_add_f32 v{b+i}, v{b+i}, v{b+8+i}")
                    for i in range(4): a(f"v_add_f32 v{b+i}, v{b+i}, v{b+4+i}")
                    if KPM:
                        if u == 0: a(f"v_lshlrev_b32 v{vU}, 3, v{vL}")
                        a(f"buffer_store_dwordx2 {vr(b,2)}, v{vU}, {sr(sWS,4)}, s{sT0} offen offset:{u*1024} sc1")
                        a(f"buffer_store_dwordx2 {vr(b+2,2)}, v{vU}, {sr(sWS,4)}, s{sT0} offen offset:{u*1024+512} sc1")
                    else:
                        a(f"buffer_store_dwordx4 {vr(b,4)}, v{vL16}, {sr(sWS,4)}, s{sT0} offen offset:{u*1024} sc1")
            only_t0(f)
            OQ = 152
            cond(f"s_cmp_eq_u32 s{sT}, 0", lambda: a(f"""
            s_add_u32 s{sT0}, s{sST}, {WS_PQ:#x}
            s_add_u32 s{sT1}, s{sT0}, 0x20000
            buffer_store_dwordx4 {vr(OQ,4)}, v{vL16}, {sr(sWS,4)}, s{sT0} offen sc1
            buffer_store_dwordx4 {vr(OQ+4,4)}, v{vL16}, {sr(sWS,4)}, s{sT0} offen offset:1024 sc1
            buffer_store_dwordx4 {vr(OQ+8,4)}, v{vL16}, {sr(sWS,4)}, s{sT1} offen sc1
            buffer_store_dwordx4 {vr(OQ+12,4)}, v{vL16}, {sr(sWS,4)}, s{sT1} offen offset:1024 sc1
            """))
            vm.issue("ast", 4 if KPM else 2)
            mark["ast"] = vm.total
        for (pd_, pr_, k, n) in WSCH:
            if NOWO: break
            if p == pr_: wo_read(k, n)
            if p == pd_:
                lg.wait("wor"); wo_dma(k, n)
        if p == PWU and not NOWO:
            a(f"""
            s_lshl_b32 s{sT0}, s{sJ}, 14
            s_lshl_b32 s{sT1}, s{sA}, 12
            s_add_u32 s{sT0}, s{sT0}, s{sT1}
            v_lshlrev_b32 v{vU}, 6, v{vL}
            """)
            cond(f"s_cmp_ge_u32 s{sW}, 4", lambda: a(f"buffer_load_dword v{vU+2}, v{vU}, {sr(sWOA,4)}, s{sT0} offen"))
            role_a(lambda: a(f"buffer_load_dword v{vU+2}, v{vU}, {sr(sWOB,4)}, s{sT0} offen"))
            vm.issue("pf")
        if p == P17:
            vm.wait(("r", 3)); a("s_barrier")
        if p == P17 + 1:
            a(f"""
            s_lshl_b32 s{sT1}, s{sG1}, 3
            s_add_u32 s{sT1}, s{sT1}, s{sW}
            s_lshl_b32 s{sT1}, s{sT1}, 1
            s_add_u32 s{sT1}, s{sT1}, s{sT}
            s_lshl_b32 s{sT1}, s{sT1}, 4
            s_add_u32 s{sT1}, s{sT1}, s{sTB}
            s_lshl_b32 s{sT1}, s{sT1}, 2
            s_add_u32 s{sT1}, s{sT1}, {WS_F2:#x}
            """)
            vm.wait_mark(mark["ast"]); put_flag(sT1)
        if P17 + 1 <= p < P17 + 5: kv_round(3 + p - P17)
        if p == PF2 - 2:
            a(f"""
            s_and_b32 s{sT0}, s{sHEAD}, 3
            s_lshl_b32 s{sT1}, s{sT0}, 1
            s_lshr_b32 s{sT2}, s{sW}, 2
            s_add_u32 s{sT1}, s{sT1}, s{sT2}
            s_lshl_b32 s{sT1}, s{sT1}, 7
            v_lshl_add_u32 v{vU+1}, v{vL}, 2, s{sT1}
            s_lshr_b32 s{sT0}, s{sT0}, 1
            s_lshl_b32 s{sT0}, s{sT0}, 2
            s_and_b32 s{sT1}, s{sTILE}, 3
            s_add_u32 s{sT0}, s{sT0}, s{sT1}
            s_lshl_b32 s{sT0}, s{sT0}, 5
            s_lshr_b32 s{sT1}, s{sTILE}, 2
            s_add_u32 s{sT0}, s{sT0}, s{sT1}
            s_lshl_b32 s{sT0}, s{sT0}, 2
            s_add_u32 s{sT0}, s{sT0}, 64
            s_mov_b64 exec, 0xffff
            s_not_b64 exec, exec
            v_mov_b32 v{vU+1}, s{sT0}
            s_mov_b64 exec, -1
            s_lshl_b32 s{sFP}, s{sG}, 10
            s_add_u32 s{sFP}, s{sFP}, {WS_F2:#x}
            s_lshl_b32 s{sPO}, s{sQB}, 13
            buffer_load_dword v{vPOLL}, v{vU+1}, {sr(sWS,4)}, s{sFP} offen sc1
            """)
            vm.issue("fl")
        if p == PF2:
            vm.wait("fl"); flag_spin(vU + 1)
        nper = (P20 - 4) - PF2
        if PF2 <= p < P20 - 4:
            for i in range(16):
                if i * nper // 16 == p - PF2: kp_load(i)
        if p == P20 - 4:
            a(f"""
            s_lshl_b32 s{sT0}, s{sHEAD}, 17
            s_lshl_b32 s{sT1}, s{sTILE}, 11
            s_add_u32 s{sT0}, s{sT0}, s{sT1}
            s_add_u32 s{sT0}, s{sT0}, {WS_PQ:#x}
            buffer_load_dwordx4 {vr(PQ,4)}, v{vL16}, {sr(sWS,4)}, s{sT0} offen sc1
            buffer_load_dwordx4 {vr(PQ+4,4)}, v{vL16}, {sr(sWS,4)}, s{sT0} offen offset:1024 sc1
            """)
            vm.issue("pq", 2)
        if p == P20 - 1:
            vm.wait("kp")
            n = 16
            while n >= 2:
                for i in range(n): a(f"v_add_f32 v{KP+i}, v{KP+i}, v{KP+n+i}")
                n //= 2
            a(f"v_cvt_pk_bf16_f32 v{KP+8}, v{KP}, v{KP+1}")
            lg.wait("wor")
            a(f"v_lshl_add_u32 v{vU}, v{vL}, 2, s{sPRIV}")
            a(f"ds_write_b32 v{vU}, v{KP+8} offset:3072"); lg.issue("kx")
            a(f"v_lshlrev_b32 v{vU+1}, 2, v{vL}")
            a(f"v_add_u32 v{vU+1}, {SPARE+3072}, v{vU+1}")
        if p == P20:
            lg.wait("kx"); vm.wait(("r", 7)); a("s_barrier")
            for j in range(8): a(f"ds_read_b32 v{KVF+j}, v{vU+1} offset:{j*4096}")
            lg.issue("kvf", 8)
        if p == P20 + 1:
            lg.wait("kvf"); vm.wait("pq")
            a(f"v_mfma_f32_32x32x16_bf16 {vr(AO,16)}, {vr(KVF,4)}, {vr(PQ,4)}, 0")
            a(f"v_mfma_f32_32x32x16_bf16 {vr(AO,16)}, {vr(KVF+4,4)}, {vr(PQ+4,4)}, {vr(AO,16)}")
        if p == P20 + 2:
            a(f"v_add_f32 v{vU}, {f32(1e-6)}, v{AO+8}")
            a(f"v_rcp_f32 v{vU}, v{vU}")
            a(f"s_lshl_b32 s{sT0}, s{sTILE}, 16")
            for i in range(8): a(f"v_mul_f32 v{AO+i}, v{vU}, v{AO+i}")
            for i in range(4): a(f"v_cvt_pk_bf16_f32 v{AO+i}, v{AO+2*i}, v{AO+2*i+1}")
            a(f"""
            s_lshl_b32 s{sT1}, s{sHEAD}, 10
            s_add_u32 s{sT0}, s{sT0}, s{sT1}
            s_add_u32 s{sT0}, s{sT0}, {WS_O:#x}
            buffer_store_dwordx4 {vr(AO,4)}, v{vL16}, {sr(sWS,4)}, s{sT0} offen sc1
            v_mov_b64 {vr(AO+4,2)}, -1
            v_mov_b64 {vr(AO+6,2)}, -1
            s_add_u32 s{sST}, s{sT0}, 0x8000
            buffer_store_dwordx4 {vr(AO+4,4)}, v{vL16}, {sr(sWS,4)}, s{sST} offen sc1
            """)
            if WLATE: a("s_barrier")
            vm.issue("oa", 2)
        if p == P20 + 9:
            a(f"""
            s_lshl_b32 s{sT1}, s{sTILE}, 5
            s_add_u32 s{sT1}, s{sT1}, s{sHEAD}
            s_lshl_b32 s{sT1}, s{sT1}, 2
            s_add_u32 s{sT1}, s{sT1}, {WS_F3:#x}
            """)
            vm.wait("oa"); put_flag(sT1)
        if p == 56:
            a(f"""
            s_lshl_b32 s{sT0}, s{sT3T}, 7
            s_lshl_b32 s{sT1}, s{sTILE}, 7
            s_sub_u32 s{sT1}, s{sT1}, 128
            v_lshl_add_u32 v{vU+1}, v{vL}, 2, s{sT0}
            s_mov_b32 exec_lo, 0
            v_lshl_add_u32 v{vU+1}, v{vL}, 2, s{sT1}
            s_mov_b32 exec_lo, -1
            s_mov_b32 s{sFP}, {WS_F3:#x}
            buffer_load_dword v{vPOLL}, v{vU+1}, {sr(sWS,4)}, s{sFP} offen sc1
            """)
            vm.issue("fl")
        if p == 60:
            vm.wait("fl"); flag_spin(vU + 1)
            a(f"""
            v_and_b32 v{vU+1}, 31, v{vL}
            v_lshlrev_b32 v{vU+1}, 3, v{vU+1}
            s_lshl_b32 s{sT0}, s{sT3T}, 8
            s_add_u32 s{sT0}, s{sT0}, {WS_G:#x}
            s_lshl_b32 s{sT1}, s{sTILE}, 8
            s_add_u32 s{sT1}, s{sT1}, {WS_G:#x}
            buffer_load_dword v{GV}, v{vU+1}, {sr(sWS,4)}, s{sT0} offen sc1
            buffer_load_dword v{GV+1}, v{vU+1}, {sr(sWS,4)}, s{sT1} offen offset:4 sc1
            s_lshl_b32 s{sKVP}, s{sT3T}, 16
            s_lshl_b32 s{sT0}, s{sA}, 13
            s_add_u32 s{sKVP}, s{sKVP}, s{sT0}
            s_add_u32 s{sKVP}, s{sKVP}, {WS_O:#x}
            s_add_u32 s{sXB}, s{sKVP}, 4096
            """)
            vm.issue("g", 2)
        fair(p)
    a.raw(".p2align 3")
    for p in range(64):
        kt, cur = p >> 1, p & 1
        kb = kt & 1
        Sc = S1 if cur else S0
        for i in range(16):
            if cur == 0:
                if i == 2:
                    if p > 0: sm(S1, kb ^ 1, 1, O1)
                    rdV(kt + 1, kb ^ 1)
                if i == 4:
                    qk(S1, kb, 1)
                    rdK(kt + 2, kb)
                if i == 10:
                    lg.wait(("v", kt)); sm(S0, kb, 0, O0)
            else:
                if i == 2: sm(S0, kb, 1, O0)
                if i == 4 and kt < 31:
                    lg.wait(("k", kt + 1)); qk(S0, kb ^ 1, 0)
                if i == 10: sm(S1, kb, 0, O1)
            if i == 7: side(p)
            if i == 12 and p in LSTAMP: stamp(a, 6 + LSTAMP.index(p))
            a(f"v_exp_f32 v{Sc+i}, v{Sc+i}")
    a(f"v_add_u32 v{vU}, s{sPRIV}, v{vL16}")
    a(f"v_xor_b32 v{vU+1}, 16384, v{vU}")
    sm(S1, 1, 1, O1)
    stamp(a, 16)
    lg.wait("wor")
    a(f"ds_write_b128 v{vU}, {vr(O1,4)}")
    a(f"ds_write_b128 v{vU}, {vr(O1+4,4)} offset:1024")
    a(f"ds_write_b32 v{vU}, v{O1+8} offset:2048")
    lg.all()
    a("s_barrier")
    a(f"ds_read_b32 v{O1+8}, v{vU+1} offset:2048")
    a(f"ds_read_b128 {vr(O1,4)}, v{vU+1}")
    a(f"ds_read_b128 {vr(O1+4,4)}, v{vU+1} offset:1024")
    a(f"""
    v_mov_b32 v{vU}, {f32(2.0**40)}
    v_mov_b32 v{vU+1}, {f32(2.0**-80)}
    v_mov_b32 v{vU+2}, 0x207
    s_waitcnt lgkmcnt(2)
    v_add_f32 v{O0+8}, v{O0+8}, v{O1+8}
    v_cmp_nle_f32 s[96:97], v{O0+8}, v{vU}
    v_cmp_nge_f32 vcc, v{O0+8}, v{vU+1}
    s_waitcnt lgkmcnt(0)
    """)
    for i in range(4): a(f"v_pk_add_f32 {vr(O0+2*i,2)}, {vr(O0+2*i,2)}, {vr(O1+2*i,2)}")
    a(f"""
    s_or_b64 s[96:97], s[96:97], vcc
    v_pk_add_f32 {vr(O1,2)}, {vr(O0,2)}, {vr(O0+2,2)}
    v_pk_add_f32 {vr(O1+2,2)}, {vr(O0+4,2)}, {vr(O0+6,2)}
    v_pk_add_f32 {vr(O1,2)}, {vr(O1,2)}, {vr(O1+2,2)}
    v_add_f32 v{O1}, v{O1}, v{O1+1}
    v_cmp_class_f32 vcc, v{O1}, v{vU+2}
    s_or_b64 vcc, s[96:97], vcc
    s_cbranch_vccnz L_FALLBACK
    """)
    a.label("L_FIN")
    a(f"v_rcp_f32 v{vU+1}, v{O0+8}")
    vm.wait("g")
    a(f"v_mul_f32 v{vU+1}, v{vU+1}, v{GV+1}")
    for i in range(4): a(f"v_pk_mul_f32 {vr(O0+2*i,2)}, {vr(O0+2*i,2)}, {vr(vU+1,2)} op_sel_hi:[1,0]")
    for i in range(4): a(f"v_cvt_pk_bf16_f32 v{QF[0]+i}, v{O0+2*i}, v{O0+2*i+1}")
    for i in range(4): a(f"v_min_u32 v{QF[0]+i}, -2, v{QF[0]+i}")
    a(f"buffer_store_dwordx4 {vr(QF[0],4)}, v{vL16}, {sr(sWS,4)}, s{sST} offen sc1")
    vm.issue("ob")
    stamp(a, 17)
    for i in range(8):
        a(f"buffer_load_dwordx4 {vr(S0+4*i,4)}, v{vL16}, {sr(sWS,4)}, s{sKVP if i < 4 else sXB} offen offset:{(i%4)*1024} sc1")
        vm.issue(("oa", i))
    CA = [NM, 96]
    def ob_load(i):
        a(f"buffer_load_dwordx4 {vr(O0+4*i,4)}, v{vL16}, {sr(sWS,4)}, s{sT0 if i < 4 else sT1} offen offset:{(i%4)*1024} sc1")
    a(f"s_add_u32 s{sT0}, s{sKVP}, 0x8000")
    a(f"s_add_u32 s{sT1}, s{sKVP}, 0x9000")
    a("s_barrier")
    a(f"""
    v_and_b32 v{vU}, 31, v{vL}
    s_lshr_b32 s{sT2}, s{sW}, 2
    s_lshl_b32 s{sT2}, s{sT2}, 5
    s_lshl_b32 s{sT3}, s{sA}, 6
    s_add_u32 s{sT2}, s{sT2}, s{sT3}
    v_add_u32 v{vU}, s{sT2}, v{vU}
    v_mul_u32_u24 v{vU}, 272, v{vU}
    v_lshrrev_b32 v{vU+1}, 5, v{vL}
    v_lshl_add_u32 v{vU}, v{vU+1}, 4, v{vU}
    v_lshrrev_b32 v{vU+1}, 3, v0
    v_mul_u32_u24 v{vU+2}, 272, v{vU+1}
    v_and_b32 v{vKA}, 7, v0
    v_lshl_add_u32 v{vU+2}, v{vKA}, 5, v{vU+2}
    v_lshlrev_b32 v{vU+1}, 10, v{vU+1}
    v_lshl_add_u32 v{vU+1}, v{vKA}, 4, v{vU+1}
    s_lshr_b32 s{sT2}, s{sT3T}, 1
    s_lshl_b32 s{sT2}, s{sT2}, 16
    s_lshl_b32 s{sT3}, s{sCB}, 7
    s_add_u32 s{sT2}, s{sT2}, s{sT3}
    """)
    for st in range(8):
        vm.wait(("oa", st))
        for p_ in range(2):
            c = "0" if st == 0 else vr(CA[p_], 16)
            a(f"v_mfma_f32_32x32x16_bf16 {vr(CA[p_],16)}, {vr(WO+8*st+4*p_,4)}, {vr(S0+4*st,4)}, {c}")
        ob_load(st); vm.issue("obl")
    for p_ in range(2):
        for i in range(8): a(f"v_pk_mul_f32 {vr(CA[p_]+2*i,2)}, {vr(CA[p_]+2*i,2)}, {vr(GV,2)} op_sel_hi:[1,0]")
    a(f"s_mov_b32 s{sCNT}, 0")
    a(f"s_mov_b32 s{sFP}, 0")
    a.label("L_OBW")
    a("s_waitcnt vmcnt(0)")
    for st in range(8):
        b = O0 + 4 * st
        a(f"s_bitcmp1_b32 s{sFP}, {st}")
        a(f"s_cbranch_scc1 L_OBN{st}")
        a(f"v_max3_u32 v{vKA}, v{b}, v{b+1}, v{b+2}")
        a(f"v_max_u32 v{vKA}, v{b+3}, v{vKA}")
        a(f"v_cmp_eq_u32 vcc, -1, v{vKA}")
        a(f"s_cbranch_vccz L_OBY{st}")
        if ORD:
            for k in range(st, 8): ob_load(k)
            a("s_branch L_OBN7")
        else:
            ob_load(st)
            a(f"s_branch L_OBN{st}")
        a.label(f"L_OBY{st}")
        for p_ in range(2):
            a(f"v_mfma_f32_32x32x16_bf16 {vr(CA[p_],16)}, {vr(WO+64+8*st+4*p_,4)}, {vr(b,4)}, {vr(CA[p_],16)}")
        a(f"s_bitset1_b32 s{sFP}, {st}")
        a.label(f"L_OBN{st}")
    a(f"s_add_u32 s{sCNT}, s{sCNT}, 1")
    a(f"s_cmp_ge_u32 s{sCNT}, {SPIN_MAX}")
    a("s_cbranch_scc1 L_OBD")
    a(f"s_cmp_lg_u32 s{sFP}, 0xff")
    a("s_cbranch_scc1 L_OBW")
    a.label("L_OBD")
    stamp(a, 18)
    a("s_nop 6")
    for p_ in range(2):
        for q in range(4):
            a(f"ds_write_b128 v{vU}, {vr(CA[p_]+4*q,4)} offset:{p_*128 + q*32}")
    a("s_waitcnt lgkmcnt(0)")
    a("s_barrier")
    R = S0
    for k in range(4):
        a(f"ds_read_b128 {vr(R+8*k,4)}, v{vU+2} offset:{k*64*272}")
        a(f"ds_read_b128 {vr(R+8*k+4,4)}, v{vU+2} offset:{k*64*272+16}")
    a("s_waitcnt lgkmcnt(4)")
    for i in range(4): a(f"v_pk_add_f32 {vr(R+2*i,2)}, {vr(R+2*i,2)}, {vr(R+8+2*i,2)}")
    a("s_waitcnt lgkmcnt(0)")
    for i in range(4): a(f"v_pk_add_f32 {vr(R+16+2*i,2)}, {vr(R+16+2*i,2)}, {vr(R+24+2*i,2)}")
    for i in range(4): a(f"v_pk_add_f32 {vr(R+2*i,2)}, {vr(R+2*i,2)}, {vr(R+16+2*i,2)}")
    for i in range(4): a(f"v_cvt_pk_bf16_f32 v{R+i}, v{R+2*i}, v{R+2*i+1}")
    a(f"buffer_store_dwordx4 {vr(R,4)}, v{vU+1}, {sr(sOUT,4)}, s{sT2} offen sc1")
    if INSTR:
        a("s_waitcnt vmcnt(0)")
        stamp(a, 19)
        a(f"""
        s_mov_b32 s{sWS+2}, 0x4000000
        s_lshl_b32 s{sT0}, s2, 3
        s_add_u32 s{sT0}, s{sT0}, s{sW}
        s_lshl_b32 s{sT0}, s{sT0}, 8
        s_add_u32 s{sT0}, s{sT0}, {WS_DBG:#x}
        v_lshlrev_b32 v{vU}, 2, v{vL}
        buffer_store_dword v{vST}, v{vU}, {sr(sWS,4)}, s{sT0} offen
        """)
    a.label("L_END")
    a("s_endpgm")
    a.label("L_FALLBACK")
    a(f"""
    v_mov_b32 v{vKA}, v{vL16}
    v_and_b32 v{vVA}, 0xffff, v{vVA}
    v_mov_b32 v{vU}, 0xff800000
    s_mov_b32 s{sCNT}, 0
    """)
    a.label("L_FB_MAX")
    a(f"ds_read_b128 {vr(KF[0],4)}, v{vKA}")
    a("s_waitcnt lgkmcnt(0)")
    a(f"v_mfma_f32_32x32x16_bf16 {vr(O1,16)}, {vr(KF[0],4)}, {vr(QF[0],4)}, 0")
    max_tree(vU, range(O1, O1 + 16), False)
    a(f"""
    v_add_u32 v{vKA}, 2048, v{vKA}
    s_add_u32 s{sCNT}, s{sCNT}, 1
    s_cmp_lt_u32 s{sCNT}, 64
    s_cbranch_scc1 L_FB_MAX
    v_mov_b32 v{vKA}, v{vL16}
    s_mov_b32 s{sCNT}, 0
    """)
    set_negm(vU)
    for i in range(16): a(f"v_mov_b32 v{O0+i}, 0")
    a.label("L_FB_LOOP")
    rdK(0, 0); rdV(0, 0)
    a("s_waitcnt lgkmcnt(0)")
    qk(O1, 0, 0)
    for i in range(16): a(f"v_exp_f32 v{O1+i}, v{O1+i}")
    sm(O1, 0, 0, O0); sm(O1, 0, 1, O0)
    a(f"""
    v_add_u32 v{vKA}, 2048, v{vKA}
    v_add_u32 v{vVA}, 2048, v{vVA}
    s_add_u32 s{sCNT}, s{sCNT}, 1
    s_cmp_lt_u32 s{sCNT}, 64
    s_cbranch_scc1 L_FB_LOOP
    s_branch L_FIN
    """)

def build(path, verbose=False):
    a = Asm()
    gen(a)
    a.finalize(verbose)
    hdr = open(f"cdna_kernels/{NAME}.s.ref").read().split("; @launch")[0]
    hdr += "; @launch grid=(256,1,1) block=(512,1,1) lds=163840\n"
    out = hdr + '.amdgcn_target "amdgcn-amd-amdhsa--gfx950"\n.text\n' + a.text()
    out += "CODE_END:\n.set CODE_SPAN, CODE_END - L_PC - 4\n"
    out += f""".section .rodata,"a"
.p2align 6
.amdhsa_kernel {NAME}_kernel
  .amdhsa_next_free_vgpr 256
  .amdhsa_next_free_sgpr 102
  .amdhsa_accum_offset 256
  .amdhsa_group_segment_fixed_size 0
  .amdhsa_kernarg_size 88
  .amdhsa_user_sgpr_count 2
  .amdhsa_user_sgpr_kernarg_segment_ptr 1
  .amdhsa_system_sgpr_workgroup_id_x 1
.end_amdhsa_kernel
"""
    open(path, "w").write(out)

if __name__ == "__main__":
    build(sys.argv[1], verbose="-v" in sys.argv)
```
